```python
import torch

def _softmax(x, axis=-1):
    return torch.softmax(x, dim=axis)
def _gelu(x):
    return torch.nn.functional.gelu(x, approximate="tanh")
def _silu(x):
    return torch.nn.functional.silu(x)
def _sigmoid(x):
    return torch.sigmoid(x)
def _layernorm(x, axis=-1, eps=1e-5):
    m = x.mean(dim=axis, keepdim=True)
    v = x.var(dim=axis, keepdim=True, unbiased=False)
    return (x - m) / torch.sqrt(v + eps)
def _scatter_add(tgt, idx, src, axis=0):
    return tgt.clone().index_add_(axis, idx, src)
def _segment_sum(src, seg, n):
    out = torch.zeros((n,) + src.shape[1:], dtype=src.dtype)
    return out.index_add_(0, seg, src)
def _pad(x, pw):
    flat = tuple(v for pair in reversed(pw) for v in pair)
    return torch.nn.functional.pad(x, flat)

kernel_name = 'recurrent_scan__compressed_kv_cla__dense_activation_relu__prompt'

def setup_inputs():

    _w = (lambda a: (lambda t: t.to(torch.bfloat16) if t.is_floating_point() else t)(torch.as_tensor(a)))
    def _A_setup():
        B, H, Sq, Sk, D, M = 1, 32, 2048, 2048, 128, 512
        Dc = 4 * D
        return {
            "x": _w((lambda *s: torch.randn(*s, dtype=torch.bfloat16) * 0.05)(B, Sq, M)),
            "c_kv": _w((lambda *s: torch.randn(*s, dtype=torch.bfloat16) * 0.2)(B, Sk, Dc)),
            "w_q": _w((lambda *s: torch.randn(*s, dtype=torch.bfloat16) * 3.2)(M, H, D) * (M ** -0.5)),
            "w_uk": _w((lambda *s: torch.randn(*s, dtype=torch.bfloat16) * 3.2)(Dc, H, D) * (Dc ** -0.5)),
            "w_uv": _w((lambda *s: torch.randn(*s, dtype=torch.bfloat16) * 0.2)(Dc, H, D) * (Dc ** -0.5)),
            "w_o": _w((lambda *s: torch.randn(*s, dtype=torch.bfloat16) * 0.2)(H, D, M) * ((H * D) ** -0.5)),
        }
    _A_in = _A_setup()

    def _B_setup():
        B, S, D, Dff = 1, 2048, 512, 1376
        return {
            "x": _w((lambda *s: torch.randn(*s, dtype=torch.bfloat16) * 0.05)(B, S, D)),
            "w1": _w((lambda *s: torch.randn(*s, dtype=torch.bfloat16) * 0.1)(D, Dff)),
            "w2": _w((lambda *s: torch.randn(*s, dtype=torch.bfloat16) * 0.1)(Dff, D)),
        }
    _B_in = _B_setup()

    return {
        "A_x": _A_in["x"],
        "A_c_kv": _A_in["c_kv"],
        "A_w_q": _A_in["w_q"],
        "A_w_uk": _A_in["w_uk"],
        "A_w_uv": _A_in["w_uv"],
        "A_w_o": _A_in["w_o"],
        "B_x": _B_in["x"],
        "B_w1": _B_in["w1"],
        "B_w2": _B_in["w2"],
    }

def reference(A_x, A_c_kv, A_w_q, A_w_uk, A_w_uv, A_w_o, B_x, B_w1, B_w2):
    def _A_ref(x, c_kv, w_q, w_uk, w_uv, w_o):
        B, Sq, M = x.shape[0], x.shape[1], x.shape[2]
        Sk = c_kv.shape[1]
        H, D = w_q.shape[1], w_q.shape[2]
        q = torch.einsum("bqm,mhd->bhqd", x, w_q)
        k = torch.einsum("bkc,chd->bhkd", c_kv, w_uk)
        v = torch.einsum("bkc,chd->bhkd", c_kv, w_uv)
        scores = torch.einsum("bhqd,bhkd->bhqk", q, k) * (D ** -0.5)
        off = Sk - Sq
        qi = torch.arange(Sq)[:, None]
        kj = torch.arange(Sk)[None, :]
        cmask = kj <= (qi + off)
        scores = torch.where(cmask[None, None], scores, -1e9)
        p = _softmax(scores, axis=-1)
        ctx = torch.einsum("bhqk,bhkd->bhqd", p, v)
        return torch.einsum("bhqd,hdm->bqm", ctx, w_o)

    def _B_ref(x, w1, w2):
        h = torch.einsum("bsd,df->bsf", x, w1)
        zero = torch.zeros_like(h)
        h = torch.maximum(h, zero)
        return torch.einsum("bsf,fd->bsd", h, w2)

    x = A_x
    xn = _layernorm(x, axis=-1)
    s = _A_ref(xn, A_c_kv, A_w_q, A_w_uk, A_w_uv, A_w_o)
    g = _silu(_B_ref(xn, B_w1, B_w2))
    return x + s * g
```

```python
import re

def v(i, n=1):
    return f"v{i}" if n == 1 else f"v[{i}:{i+n-1}]"
def a(i, n=1):
    return f"a{i}" if n == 1 else f"a[{i}:{i+n-1}]"
def s(i, n=1):
    return f"s{i}" if n == 1 else f"s[{i}:{i+n-1}]"

TRANS = ("v_exp_f32", "v_log_f32", "v_rcp_f32", "v_rsq_f32", "v_sqrt_f32", "v_sin_f32", "v_cos_f32")

class Kern:
    def __init__(self, name):
        self.name = name
        self.lines = []
        self._lab = 0
    def I(self, text):
        self.lines.append("  " + text)
    def L(self, name):
        self.lines.append(name + ":")
    def C(self, text):
        self.lines.append("  ; " + text)
    def newlabel(self, base):
        self._lab += 1
        return f"L_{self.name}_{base}_{self._lab}"
    def nop(self, n):
        while n > 0:
            k = min(n, 16)
            self.I(f"s_nop {k-1}")
            n -= k
    def text(self):
        return "\n".join(self.lines)

REG_RE = re.compile(r"^(-?)(abs\()?([vas])(\d+)\)?$|^(-?)([vas])\[(\d+):(\d+)\]$")

def parse_reg(tok):
    tok = tok.strip()
    m = re.match(r"^-?([vas])(\d+)$", tok)
    if m:
        return [(m.group(1), int(m.group(2)))]
    m = re.match(r"^-?([vas])\[(\d+):(\d+)\]$", tok)
    if m:
        return [(m.group(1), i) for i in range(int(m.group(2)), int(m.group(3)) + 1)]
    if tok == "vcc":
        return [("vcc", 0)]
    if tok == "m0":
        return [("m0", 0)]
    if tok == "exec":
        return [("exec", 0)]
    return []

def split_ops(rest):
    out, depth, cur = [], 0, ""
    for ch in rest:
        if ch == "[": depth += 1
        if ch == "]": depth -= 1
        if ch == "," and depth == 0:
            out.append(cur.strip()); cur = ""
        else:
            cur += ch
    if cur.strip():
        out.append(cur.strip())
    return out

class Ins:
    __slots__ = ("text", "mn", "rd", "wr", "cls", "states", "srcC", "mfma_ab", "wide_store_data", "dpp", "line")

def analyze(line, lineno):
    t = line.split(";")[0].strip()
    if not t or t.endswith(":") or t.startswith("."):
        return None
    parts = t.split(None, 1)
    mn = parts[0]
    rest = parts[1] if len(parts) > 1 else ""
    ins = Ins(); ins.text = t; ins.mn = mn; ins.rd = set(); ins.wr = set(); ins.states = 1
    ins.srcC = set(); ins.mfma_ab = set(); ins.wide_store_data = set(); ins.dpp = False; ins.line = lineno
    ops = split_ops(rest)
    toks = []
    mods = []
    for o in ops:
        ps = o.split()
        toks.append(ps[0]); mods += ps[1:]
    if mn == "s_nop":
        ins.cls = "nop"; ins.states = int(toks[0]) + 1; return ins
    if mn.startswith("v_mfma"):
        ins.cls = "mfma"
        ins.wr |= set(parse_reg(toks[0]))
        ins.mfma_ab = set(parse_reg(toks[1])) | set(parse_reg(toks[2]))
        ins.srcC = set(parse_reg(toks[3]))
        ins.rd |= ins.mfma_ab | ins.srcC
        return ins
    if mn.startswith("v_"):
        ins.cls = "trans" if mn.replace("_e32", "").replace("_e64", "") in TRANS else "valu"
        if any(m.startswith("row_") or m.startswith("quad_perm") for m in mods): ins.dpp = True
        if mn.startswith("v_permlane"):
            r = set(parse_reg(toks[0])) | set(parse_reg(toks[1]))
            ins.rd |= r; ins.wr |= r; return ins
        ins.wr |= set(parse_reg(toks[0]))
        srcs = toks[1:]
        if mn.startswith("v_add_co") or mn.startswith("v_sub_co") or mn.startswith("v_addc_co"):
            ins.wr |= set(parse_reg(toks[1])); srcs = toks[2:]
        for o in srcs:
            ins.rd |= set(parse_reg(o))
        if mn.startswith("v_fmac") or mn.startswith("v_dot2c"):
            ins.rd |= set(parse_reg(toks[0]))
        if mn.startswith("v_cndmask") and len(toks) == 3:
            ins.rd.add(("vcc", 0))
        if mn.startswith("v_cmpx"):
            ins.wr.add(("exec", 0))
        return ins
    if mn.startswith("buffer_") or mn.startswith("global_"):
        ins.cls = "vmem"
        is_lds = "lds" in mods
        if "load" in mn and not is_lds:
            ins.wr |= set(parse_reg(toks[0]))
            for o in toks[1:]: ins.rd |= set(parse_reg(o))
        else:
            for o in toks: ins.rd |= set(parse_reg(o))
            if is_lds: ins.rd.add(("m0", 0))
            if "store" in mn and ("x4" in mn or "x3" in mn):
                ins.wide_store_data = set(parse_reg(toks[0]))
        return ins
    if mn.startswith("ds_"):
        ins.cls = "ds"
        if mn.startswith("ds_write"):
            for o in toks: ins.rd |= set(parse_reg(o))
        else:
            ins.wr |= set(parse_reg(toks[0]))
            for o in toks[1:]: ins.rd |= set(parse_reg(o))
        return ins
    if mn.startswith("s_"):
        ins.cls = "salu"
        if mn in ("s_waitcnt", "s_barrier", "s_endpgm", "s_setprio", "s_branch") or mn.startswith("s_cbranch") or mn.startswith("s_cmp"):
            for o in toks: ins.rd |= set(parse_reg(o))
            return ins
        if mn.startswith("s_load"):
            ins.wr |= set(parse_reg(toks[0]))
            for o in toks[1:]: ins.rd |= set(parse_reg(o))
            return ins
        ins.wr |= set(parse_reg(toks[0]))
        for o in toks[1:]: ins.rd |= set(parse_reg(o))
        if "saveexec" in mn:
            ins.wr.add(("exec", 0)); ins.rd.add(("exec", 0))
        return ins
    raise ValueError("unknown instr: " + t)

def check_hazards(text):
    insl = []
    for n, line in enumerate(text.splitlines(), 1):
        i = analyze(line, n)
        if i is not None:
            insl.append(i)
    probs = []
    for k, c in enumerate(insl):
        dist = 0
        j = k - 1
        while j >= 0 and dist < 24:
            p = insl[j]
            need = 0; why = ""
            pv = p.cls in ("valu", "trans")
            cv = c.cls in ("valu", "trans")
            pw_v = {r for r in p.wr if r[0] in "va"}
            pw_s = {r for r in p.wr if r[0] in ("s", "vcc")}
            if pv and c.cls == "mfma" and (pw_v & c.rd):
                need, why = max(need, 2), "VALU->MFMA operand"
            if p.cls == "mfma":
                D = p.wr
                big = "32x32" in p.mn
                if c.cls == "mfma":
                    if D & c.mfma_ab:
                        need, why = max(need, 12 if big else 8), "MFMA D->MFMA A/B"
                    if D & c.srcC and (c.srcC != D):
                        need, why = max(need, 10 if big else 6), "MFMA D->MFMA C overlap"
                    if (D & c.wr) and not (c.srcC == D and c.wr == D):
                        need, why = max(need, 12 if big else 8), "MFMA D WAW"
                elif c.cls in ("valu", "trans", "vmem", "ds"):
                    if D & (c.rd | c.wr):
                        need, why = max(need, 12 if big else 8), "MFMA D->non-MFMA"
                if cv and (p.srcC & c.wr):
                    need, why = max(need, 7 if big else 3), "MFMA C WAR"
            if p.cls == "trans" and c.cls == "valu" and (pw_v & c.rd):
                need, why = max(need, 1), "trans->valu"
            if pv and c.mn.startswith("v_permlane") and (pw_v & c.rd):
                need, why = max(need, 2), "VALU->permlane"
            if pv and cv and (pw_s & c.rd):
                need, why = max(need, 2), "VALU sgpr->VALU read"
            if pv and c.cls == "vmem" and (pw_s & c.rd):
                need, why = max(need, 5), "VALU sgpr->VMEM"
            if p.cls == "salu" and ("m0", 0) in p.wr and c.cls == "vmem" and ("m0", 0) in c.rd:
                need, why = max(need, 1), "m0->DMA"
            if pv and (c.mn.startswith("v_readlane") or c.mn.startswith("v_readfirstlane")) and (pw_v & c.rd):
                need, why = max(need, 1), "VALU->readlane"
            if p.wide_store_data and (p.wide_store_data & c.wr):
                need, why = max(need, 2 if cv else 1), "wide store WAR"
            if pv and cv and c.dpp and (pw_v & c.rd):
                need, why = max(need, 2), "VALU->DPP"
            if pv and ("exec", 0) in p.wr and c.cls == "mfma":
                need, why = max(need, 4), "exec->mfma"
            if need > dist:
                probs.append(f"line {c.line}: '{c.text}' needs {need} after line {p.line} '{p.text}' ({why}), has {dist}")
            dist += p.states
            j -= 1
    return probs
```

```python
from asmlib import *

MB = 1 << 20
XN_OFF = 0
QW_OFF = 16 * MB
KW_OFF = 32 * MB
VT_OFF = 48 * MB
H_OFF = 64 * MB
CTX_OFF = 80 * MB
PART_OFF = 96 * MB
WS_SIZE = 128 * MB
BIGOFF = 0x7FFFFFF0

QSCALE = 1.4426950408889634 / (128.0 ** 0.5)

import struct
def f32bits(x):
    return "0x%08x" % struct.unpack("<I", struct.pack("<f", x))[0]

def srd(k, d, base_lo, base_hi, size, add=0):
    if add:
        k.I(f"s_add_u32 s{d}, s{base_lo}, {hex(add)}")
        k.I(f"s_addc_u32 s{d+1}, s{base_hi}, 0")
    else:
        k.I(f"s_mov_b32 s{d}, s{base_lo}")
        k.I(f"s_mov_b32 s{d+1}, s{base_hi}")
    k.I(f"s_mov_b32 s{d+2}, {hex(size)}")
    k.I(f"s_mov_b32 s{d+3}, 0x00020000")

def wave_allreduce_add(k, vx, vt):
    for m in (0x041F, 0x081F, 0x101F, 0x201F, 0x401F):
        k.I(f"ds_swizzle_b32 v{vt}, v{vx} offset:{hex(m)}")
        k.I("s_waitcnt lgkmcnt(0)")
        k.I(f"v_add_f32 v{vx}, v{vx}, v{vt}")
    k.I(f"v_mov_b32 v{vt}, v{vx}")
    k.I("s_nop 1")
    k.I(f"v_permlane32_swap_b32 v{vt}, v{vx}")
    k.I(f"v_add_f32 v{vx}, v{vx}, v{vt}")

def round_bf16(k, vd, vs):
    k.I(f"v_cvt_pk_bf16_f32 v{vd}, v{vs}, v{vs}")
    k.I(f"v_and_b32 v{vd}, 0xffff0000, v{vd}")

def gen_ln():
    k = Kern("ln")
    k.L("ln_kernel")
    k.I("s_cmp_ge_u32 s2, 512")
    k.I("s_cbranch_scc1 L_ln_done")
    k.I("s_load_dwordx2 s[4:5], s[0:1], 0")
    k.I("s_load_dwordx2 s[6:7], s[0:1], 88")
    k.I("v_lshrrev_b32 v1, 6, v0")
    k.I("v_and_b32 v2, 63, v0")
    k.I("s_lshl_b32 s3, s2, 2")
    k.I("v_add_u32 v1, s3, v1")
    k.I("v_lshlrev_b32 v1, 10, v1")
    k.I("v_lshl_add_u32 v1, v2, 4, v1")
    k.I("s_waitcnt lgkmcnt(0)")
    srd(k, 8, 4, 5, 2 * MB)
    srd(k, 12, 6, 7, 2 * MB, XN_OFF)
    k.I("buffer_load_dwordx4 v[4:7], v1, s[8:11], 0 offen")
    k.I("s_waitcnt vmcnt(0)")
    for i in range(4):
        k.I(f"v_lshlrev_b32 v{8+2*i}, 16, v{4+i}")
        k.I(f"v_and_b32 v{9+2*i}, 0xffff0000, v{4+i}")
    k.I("v_add_f32 v16, v8, v9")
    k.I("v_add_f32 v17, v10, v11")
    k.I("v_add_f32 v18, v12, v13")
    k.I("v_add_f32 v19, v14, v15")
    k.I("v_add_f32 v16, v16, v17")
    k.I("v_add_f32 v18, v18, v19")
    k.I("v_add_f32 v16, v16, v18")
    wave_allreduce_add(k, 16, 17)
    k.I(f"v_mul_f32 v16, {f32bits(1.0/512)}, v16")
    k.I("v_mov_b32 v18, 0")
    for i in range(8):
        k.I(f"v_sub_f32 v19, v{8+i}, v16")
        k.I("v_fmac_f32 v18, v19, v19")
    wave_allreduce_add(k, 18, 17)
    k.I(f"v_mul_f32 v18, {f32bits(1.0/512)}, v18")
    round_bf16(k, 16, 16)
    round_bf16(k, 18, 18)
    k.I(f"v_add_f32 v18, {f32bits(1e-5)}, v18")
    round_bf16(k, 18, 18)
    k.I("v_sqrt_f32 v18, v18")
    k.I("s_nop 0")
    round_bf16(k, 18, 18)
    k.I("v_rcp_f32 v19, v18")
    for i in range(8):
        k.I(f"v_sub_f32 v{8+i}, v{8+i}, v16")
    for i in range(4):
        k.I(f"v_cvt_pk_bf16_f32 v{4+i}, v{8+2*i}, v{9+2*i}")
    for i in range(4):
        k.I(f"v_lshlrev_b32 v{8+2*i}, 16, v{4+i}")
        k.I(f"v_and_b32 v{9+2*i}, 0xffff0000, v{4+i}")
    for i in range(8):
        k.I(f"v_mul_f32 v20, v{8+i}, v19")
        k.I(f"v_fma_f32 v21, -v20, v18, v{8+i}")
        k.I(f"v_fma_f32 v{8+i}, v21, v19, v20")
    for i in range(4):
        k.I(f"v_cvt_pk_bf16_f32 v{4+i}, v{8+2*i}, v{9+2*i}")
    k.I("buffer_store_dwordx4 v[4:7], v1, s[12:15], 0 offen")
    k.L("L_ln_done")
    k.I("s_endpgm")
    k.meta = dict(vgpr=24, agpr=0, sgpr=24)
    return k

def gen_proj():
    k = Kern("proj")
    S_A = 8; S_WS = 12; S_BC = 16; S_BN = 20
    sPlo = 24; sPhi = 26; sSzHi = 28; sStrHi = 29
    sU = 30; sUend = 31; sWb = 32; sIsX = 33
    sSoC = 34; sS8C = 35; sS128C = 36
    sSoN = 37; sS8N = 38; sS128N = 39
    sT = 40; sT2 = 41; sM = 42
    sRb = 44; sOutU = 45; sScale = 46
    vL = 1; vT = 2; vT2 = 3; vT3 = 4
    vRd0 = 5; vRd1 = 6
    vDmaLo = 7; vDmaHi = 8; vDmaC = 9; vDmaN = 10
    vRowLo = 11; vRowHi = 12; vSt0 = 13; vSt1 = 14
    vAcc = 16
    vPk = 48
    vFr = 64
    NFR = 6
    NV = vFr + NFR * 4

    k.L("proj_kernel")
    k.I("s_cmp_ge_u32 s2, 256")
    k.I("s_cbranch_scc1 L_proj_done")
    k.I("s_load_dwordx4 s[48:51], s[0:1], 0")
    k.I("s_load_dwordx4 s[52:55], s[0:1], 16")
    k.I("s_load_dwordx2 s[56:57], s[0:1], 32")
    k.I("s_load_dwordx2 s[58:59], s[0:1], 56")
    k.I("s_load_dwordx2 s[60:61], s[0:1], 88")
    k.I("s_and_b32 s62, s2, 7")
    k.I("s_lshr_b32 s63, s2, 3")
    k.I(f"s_and_b32 s{sRb}, s63, 7")
    k.I("s_lshr_b32 s63, s63, 3")
    k.I("s_lshl_b32 s62, s62, 2")
    k.I("s_add_u32 s62, s62, s63")
    k.I("s_cmp_lt_u32 s62, 13")
    k.I(f"s_cselect_b32 s{sIsX}, 1, 0")
    k.I("s_sub_u32 s63, s62, 13")
    k.I("s_cselect_b32 s62, s62, s63")
    k.I(f"s_mul_i32 s{sU}, s62, 7")
    k.I(f"s_add_u32 s{sUend}, s{sU}, 7")
    k.I(f"s_cmp_eq_u32 s{sIsX}, 1")
    k.I("s_mov_b32 s63, 128")
    k.I("s_cselect_b32 s63, 86, s63")
    k.I(f"s_min_u32 s{sUend}, s{sUend}, s63")
    k.I(f"v_and_b32 v{vL}, 63, v0")
    k.I(f"v_lshrrev_b32 v{vT}, 6, v0")
    k.I("s_nop 0")
    k.I(f"v_readfirstlane_b32 s{sWb}, v{vT}")
    k.I("s_waitcnt lgkmcnt(0)")
    k.I(f"s_cmp_eq_u32 s{sIsX}, 1")
    k.I(f"s_cselect_b32 s{sPlo}, s52, s54")
    k.I(f"s_cselect_b32 s{sPlo+1}, s53, s55")
    k.I(f"s_cselect_b32 s{sPhi}, s58, s56")
    k.I(f"s_cselect_b32 s{sPhi+1}, s59, s57")
    k.I(f"s_mov_b32 s{sT}, {512*1376*2}")
    k.I(f"s_mov_b32 s{sT2}, {4*MB}")
    k.I(f"s_cselect_b32 s{sSzHi}, s{sT}, s{sT2}")
    k.I(f"s_mov_b32 s{sT}, 2752")
    k.I(f"s_mov_b32 s{sT2}, 8192")
    k.I(f"s_cselect_b32 s{sStrHi}, s{sT}, s{sT2}")
    k.I(f"s_add_u32 s{sT}, s60, {hex(XN_OFF)}")
    k.I(f"s_addc_u32 s{sT2}, s61, 0")
    k.I(f"s_cmp_eq_u32 s{sIsX}, 1")
    k.I(f"s_cselect_b32 s{S_A}, s{sT}, s50")
    k.I(f"s_cselect_b32 s{S_A+1}, s{sT2}, s51")
    k.I(f"s_mov_b32 s{S_A+2}, {hex(2*MB)}")
    k.I(f"s_mov_b32 s{S_A+3}, 0x00020000")
    srd(k, S_WS, 60, 61, WS_SIZE)
    k.I(f"s_lshl_b32 s{sT}, s{sRb}, 8")
    k.I(f"s_lshl_b32 s{sT2}, s{sWb}, 5")
    k.I(f"s_add_u32 s{sT}, s{sT}, s{sT2}")
    k.I(f"v_and_b32 v{vT}, 31, v{vL}")
    k.I(f"v_add_u32 v{vT}, s{sT}, v{vT}")
    k.I(f"v_lshrrev_b32 v{vT2}, 5, v{vL}")
    k.I(f"v_lshlrev_b32 v{vT2}, 4, v{vT2}")
    k.I(f"v_lshl_add_u32 v{vT3}, v{vT}, 10, v{vT2}")
    for ks in range(32):
        k.I(f"buffer_load_dwordx4 {a(4*ks,4)}, v{vT3}, s[{S_A}:{S_A+3}], 0 offen offset:{ks*32}")
    k.I(f"v_lshl_add_u32 v{vRowLo}, v{vT}, 8, v{vT2}")
    k.I(f"s_mov_b32 s{sT}, 2752")
    k.I(f"v_mul_lo_u32 v{vRowHi}, v{vT}, s{sT}")
    k.I(f"v_add_u32 v{vRowHi}, v{vRowHi}, v{vT2}")
    k.I(f"s_lshl_b32 s{sT}, s{sRb}, 3")
    k.I(f"s_add_u32 s{sT}, s{sT}, s{sWb}")
    k.I(f"s_lshl_b32 s{sT}, s{sT}, 13")
    k.I(f"v_and_b32 v{vT3}, 31, v{vL}")
    k.I(f"v_lshl_add_u32 v{vT3}, v{vT3}, 6, v{vT2}")
    k.I(f"v_add_u32 v{vT3}, s{sT}, v{vT3}")
    k.I(f"s_cmp_eq_u32 s{sIsX}, 1")
    k.I(f"s_cselect_b64 s[{sM}:{sM+1}], -1, 0")
    k.I(f"v_cndmask_b32 v{vRowHi}, v{vT3}, v{vRowHi}, s[{sM}:{sM+1}]")
    k.I(f"v_lshrrev_b32 v{vT}, 3, v{vL}")
    k.I(f"s_lshl_b32 s{sT}, s{sWb}, 4")
    k.I(f"v_add_u32 v{vT}, s{sT}, v{vT}")
    k.I(f"v_and_b32 v{vT2}, 7, v{vL}")
    k.I(f"v_lshrrev_b32 v{vT3}, 2, v{vL}")
    k.I(f"v_and_b32 v{vT3}, 4, v{vT3}")
    k.I(f"v_xor_b32 v{vT2}, v{vT2}, v{vT3}")
    k.I(f"v_lshlrev_b32 v{vT2}, 4, v{vT2}")
    k.I(f"v_lshl_add_u32 v{vDmaLo}, v{vT}, 13, v{vT2}")
    k.I(f"v_mul_lo_u32 v{vDmaHi}, v{vT}, s{sStrHi}")
    k.I(f"v_add_u32 v{vDmaHi}, v{vDmaHi}, v{vT2}")
    k.I(f"v_lshrrev_b32 v{vT}, 5, v{vL}")
    k.I(f"v_lshlrev_b32 v{vT}, 3, v{vT}")
    k.I(f"v_bfe_u32 v{vT2}, v{vL}, 2, 2")
    k.I(f"v_add_u32 v{vT}, v{vT}, v{vT2}")
    k.I(f"v_lshlrev_b32 v{vRd0}, 7, v{vT}")
    k.I(f"v_bfe_u32 v{vT}, v{vL}, 3, 1")
    k.I(f"v_lshl_add_u32 v{vRd0}, v{vT}, 6, v{vRd0}")
    k.I(f"v_bfe_u32 v{vT}, v{vL}, 4, 1")
    k.I(f"v_lshl_add_u32 v{vRd0}, v{vT}, 5, v{vRd0}")
    k.I(f"v_and_b32 v{vT}, 3, v{vL}")
    k.I(f"v_lshl_add_u32 v{vRd0}, v{vT}, 3, v{vRd0}")
    k.I(f"v_xor_b32 v{vRd1}, 64, v{vRd0}")
    k.I(f"v_mov_b32 v{vSt0}, {hex(BIGOFF)}")
    k.I(f"v_mov_b32 v{vSt1}, {hex(BIGOFF)}")
    k.I(f"s_lshl_b32 s{sWb}, s{sWb}, 11")
    k.I(f"s_mov_b32 s{sScale}, {f32bits(QSCALE)}")

    def desc(su_expr_reg, D, so, s8, s128, vd):
        k.I(f"s_cmp_ge_u32 s{su_expr_reg}, 64")
        k.I(f"s_cselect_b32 s{D}, s{sPhi}, s{sPlo}")
        k.I(f"s_cselect_b32 s{D+1}, s{sPhi+1}, s{sPlo+1}")
        k.I(f"s_cselect_b32 s{D+2}, s{sSzHi}, {hex(4*MB)}")
        k.I(f"s_cselect_b32 s{s8}, s{sStrHi}, 8192")
        k.I(f"s_cselect_b64 s[{sM}:{sM+1}], -1, 0")
        k.I(f"s_mov_b32 s{D+3}, 0x00020000")
        k.I(f"v_cndmask_b32 v{vd}, v{vDmaLo}, v{vDmaHi}, s[{sM}:{sM+1}]")
        k.I(f"s_cmp_ge_u32 s{su_expr_reg}, s{sUend}")
        k.I(f"s_cselect_b32 s{D+2}, 0, s{D+2}")
        k.I(f"s_and_b32 s{so}, s{su_expr_reg}, 63")
        k.I(f"s_lshl_b32 s{so}, s{so}, 7")
        k.I(f"s_lshl_b32 s{s128}, s{s8}, 7")
        k.I(f"s_lshl_b32 s{s8}, s{s8}, 3")

    def dma(stage, slot, D, so, s8, s128, vd):
        k.I(f"s_mul_i32 s{sT}, s{s128}, {stage}")
        k.I(f"s_add_u32 s{sT}, s{sT}, s{so}")
        k.I(f"s_add_u32 m0, s{sWb}, {slot*16384}")
        k.I(f"s_add_u32 s{sT2}, s{sT}, s{s8}")
        k.I(f"buffer_load_dwordx4 v{vd}, s[{D}:{D+3}], s{sT} offen lds")
        k.I(f"s_add_u32 m0, s{sWb}, {slot*16384+1024}")
        k.I("s_nop 0")
        k.I(f"buffer_load_dwordx4 v{vd}, s[{D}:{D+3}], s{sT2} offen lds")

    desc(sU, S_BC, sSoC, sS8C, sS128C, vDmaC)
    for st in range(3):
        dma(st, st, S_BC, sSoC, sS8C, sS128C, vDmaC)

    def deferred_stores():
        for t, vs in ((0, vSt0), (1, vSt1)):
            for jp in range(2):
                k.I(f"buffer_store_dwordx4 {v(vPk+8*t+4*jp,4)}, v{vs}, s[{S_WS}:{S_WS+3}], 0 offen offset:{32*jp}")

    def body(orient):
        NW = [4, 8, 8, 8]
        for j in range(4):
            k.I(f"s_waitcnt vmcnt({NW[j]})")
            k.I("s_barrier")
            if j == 0:
                dma(3, 3, S_BC, sSoC, sS8C, sS128C, vDmaC)
                deferred_stores()
            else:
                dma(j - 1, j - 1, S_BN, sSoN, sS8N, sS128N, vDmaN)
            seq = [(ks, t) for ks in range(8) for t in range(2)]
            AHEAD = NFR - 1
            issued = 0
            def rd(i):
                ks, t = seq[i]
                fr = vFr + 4 * (i % NFR)
                base = vRd0 if t == 0 else vRd1
                off = j * 16384 + ks * 2048
                k.I(f"ds_read_b64_tr_b16 {v(fr,2)}, v{base} offset:{off}")
                k.I(f"ds_read_b64_tr_b16 {v(fr+2,2)}, v{base} offset:{off+512}")
            for i in range(min(AHEAD, 16)):
                rd(i); issued += 1
            for i in range(16):
                ks, t = seq[i]
                fr = vFr + 4 * (i % NFR)
                k.I(f"s_waitcnt lgkmcnt({2*(issued-1-i)})")
                kg = 8 * j + ks
                acc = v(vAcc + 16 * t, 16)
                c = "0" if kg == 0 else acc
                if orient == "N":
                    k.I(f"v_mfma_f32_32x32x16_bf16 {acc}, {v(fr,4)}, {a(4*kg,4)}, {c}")
                else:
                    k.I(f"v_mfma_f32_32x32x16_bf16 {acc}, {a(4*kg,4)}, {v(fr,4)}, {c}")
                if issued < 16:
                    rd(issued); issued += 1

    def pack(kind):
        k.nop(12)
        for t in range(2):
            base = vAcc + 16 * t
            if kind == "Q":
                for r in range(16):
                    k.I(f"v_mul_f32 v{base+r}, s{sScale}, v{base+r}")
            if kind == "H":
                for r in range(16):
                    k.I(f"v_max_f32 v{base+r}, 0, v{base+r}")
            for x in range(8):
                k.I(f"v_cvt_pk_bf16_f32 v{vPk+8*t+x}, v{base+2*x}, v{base+2*x+1}")
        if kind != "V":
            k.I("s_nop 1")
            for t in range(2):
                for jp in range(2):
                    b = vPk + 8 * t + 4 * jp
                    k.I(f"v_permlane32_swap_b32 v{b}, v{b+2}")
                    k.I(f"v_permlane32_swap_b32 v{b+1}, v{b+3}")

    k.L("L_proj_unit")
    k.I(f"s_add_u32 s{sOutU}, s{sU}, 1")
    desc(sOutU, S_BN, sSoN, sS8N, sS128N, vDmaN)
    k.I(f"s_cmp_ge_u32 s{sU}, 64")
    k.I(f"s_cselect_b32 s{sT}, 1, 0")
    k.I(f"s_cmp_eq_u32 s{sIsX}, 0")
    k.I(f"s_cselect_b32 s{sT}, s{sT}, 0")
    k.I(f"s_cmp_eq_u32 s{sT}, 1")
    k.I("s_cbranch_scc1 L_proj_bodyV")
    body("N")
    k.I(f"s_cmp_ge_u32 s{sU}, 64")
    k.I("s_cbranch_scc1 L_proj_epiH")
    k.I(f"s_cmp_eq_u32 s{sIsX}, 1")
    k.I("s_cbranch_scc1 L_proj_epiQ")
    pack("K")
    k.I(f"s_mov_b32 s{sT2}, {hex(KW_OFF)}")
    k.I("s_branch L_proj_qkoff")
    k.L("L_proj_epiQ")
    pack("Q")
    k.I(f"s_mov_b32 s{sT2}, {hex(QW_OFF)}")
    k.L("L_proj_qkoff")
    k.I(f"s_lshr_b32 s{sT}, s{sU}, 1")
    k.I(f"s_lshl_b32 s{sT}, s{sT}, 19")
    k.I(f"s_add_u32 s{sT2}, s{sT2}, s{sT}")
    k.I(f"s_and_b32 s{sT}, s{sU}, 1")
    k.I(f"s_lshl_b32 s{sT}, s{sT}, 7")
    k.I(f"s_add_u32 s{sT2}, s{sT2}, s{sT}")
    k.I(f"v_add_u32 v{vSt0}, s{sT2}, v{vRowLo}")
    k.I(f"v_add_u32 v{vSt1}, 64, v{vSt0}")
    k.I("s_branch L_proj_unit_end")
    k.L("L_proj_epiH")
    pack("H")
    k.I(f"s_sub_u32 s{sT}, s{sU}, 64")
    k.I(f"s_lshl_b32 s{sT}, s{sT}, 7")
    k.I(f"s_add_u32 s{sT}, s{sT}, {hex(H_OFF)}")
    k.I(f"v_add_u32 v{vSt0}, s{sT}, v{vRowHi}")
    k.I(f"v_add_u32 v{vSt1}, 64, v{vSt0}")
    k.I(f"s_cmp_eq_u32 s{sU}, 85")
    k.I(f"s_cselect_b64 s[{sM}:{sM+1}], -1, 0")
    k.I(f"v_mov_b32 v{vT}, {hex(BIGOFF)}")
    k.I(f"v_cndmask_b32 v{vSt1}, v{vSt1}, v{vT}, s[{sM}:{sM+1}]")
    k.I("s_branch L_proj_unit_end")
    k.L("L_proj_bodyV")
    body("V")
    pack("V")
    k.I(f"s_sub_u32 s{sT}, s{sU}, 64")
    k.I(f"s_lshr_b32 s{sT2}, s{sT}, 1")
    k.I(f"s_lshl_b32 s{sT2}, s{sT2}, 19")
    k.I(f"s_and_b32 s{sT}, s{sT}, 1")
    k.I(f"s_lshl_b32 s{sT}, s{sT}, 12")
    k.I(f"s_add_u32 s{sT}, s{sT}, s{sT2}")
    k.I(f"s_add_u32 s{sT}, s{sT}, {hex(VT_OFF)}")
    k.I(f"v_add_u32 v{vSt0}, s{sT}, v{vRowHi}")
    k.I(f"v_add_u32 v{vSt1}, 2048, v{vSt0}")
    k.L("L_proj_unit_end")
    for i in range(4):
        k.I(f"s_mov_b32 s{S_BC+i}, s{S_BN+i}")
    k.I(f"s_mov_b32 s{sSoC}, s{sSoN}")
    k.I(f"s_mov_b32 s{sS8C}, s{sS8N}")
    k.I(f"s_mov_b32 s{sS128C}, s{sS128N}")
    k.I(f"v_mov_b32 v{vDmaC}, v{vDmaN}")
    k.I(f"s_add_u32 s{sU}, s{sU}, 1")
    k.I(f"s_cmp_lt_u32 s{sU}, s{sUend}")
    k.I("s_cbranch_scc1 L_proj_unit")
    deferred_stores()
    k.L("L_proj_done")
    k.I("s_endpgm")
    k.meta = dict(vgpr=NV, agpr=128, sgpr=72)
    return k
```

```python
from asmlib import *
from k01 import *

NEGBIG = f32bits(-1e30)
FLOOR0 = f32bits(-1e20)
THR = f32bits(8.0)

def schedule(k, mf, streams, budget=24):
    pos = [0] * len(streams)
    carry = 0
    for g, m in enumerate(mf):
        if isinstance(m, str):
            k.I(m)
        else:
            for x in m: k.I(x)
        b = budget + carry
        used = [0] * len(streams)
        progress = True
        while progress:
            progress = False
            for si, st in enumerate(streams):
                if pos[si] >= len(st["items"]): continue
                text, cost, earliest = st["items"][pos[si]]
                if earliest > g: continue
                if st.get("maxper") is not None and used[si] >= st["maxper"]: continue
                if cost > b: continue
                k.I(text); pos[si] += 1; used[si] += 1; b -= cost
                progress = True
                break
        carry = min(b, 8) if b > 0 else 0
    for si, st in enumerate(streams):
        while pos[si] < len(st["items"]):
            k.I(st["items"][pos[si]][0]); pos[si] += 1

def gen_attn():
    k = Kern("attn")
    S_K = 8; S_V = 12; S_Q = 16; S_C = 20
    sW = 24; sR = 25; sCc = 26; sH = 27
    sT = 28; sTn = 29; sNA = 30; sNB = 31; sNA2 = 32
    sG = 33
    sK1 = 34; sK2 = 35; sOff = 36; sA = 37; sB = 38; sLim = 39
    sSlot = 40; sWb = 41; sCnt = 42; sTileIdx = 43; sMo = 44; sC16 = 45
    sMk = 48
    vL = 1; vT0 = 2; vT1 = 3; vT2 = 4; vT3 = 5
    SB = [16, 48]
    vNegm = 80
    vP = 112
    vKf = 128; vVf = 160
    vKrd = 192; vVrd = 200; vKdma = 202; vVdma = 206
    vLs = 208; vMx = 210; vThr = 212; vFloor = 213
    vTmp = 214
    vDq0 = 222; vDq = 224; vNB = 226; vQoff = 227; vCoff = 228; vMst = 229; vMo = 230
    NV = 232
    aO = 0; aQ = 128
    KRING = 0; VRING = 65536; MREG = 131072

    k.L("attn_kernel")
    k.I("s_cmp_ge_u32 s2, 256")
    k.I("s_cbranch_scc1 L_attn_done")
    k.I("s_load_dwordx2 s[60:61], s[0:1], 88")
    k.I("s_and_b32 s62, s2, 7")
    k.I("s_lshr_b32 s63, s2, 3")
    k.I(f"s_lshl_b32 s{sH}, s62, 2")
    k.I("s_lshr_b32 s62, s63, 3")
    k.I(f"s_add_u32 s{sH}, s{sH}, s62")
    k.I("s_and_b32 s63, s63, 7")
    k.I(f"s_sub_u32 s{sT}, 15, s63")
    k.I(f"s_mov_b32 s{sTn}, s63")
    k.I(f"s_lshl_b32 s{sNA}, s{sT}, 1")
    k.I(f"s_add_u32 s{sNA}, s{sNA}, 2")
    k.I(f"s_lshl_b32 s{sNB}, s{sTn}, 1")
    k.I(f"s_add_u32 s{sNB}, s{sNB}, 2")
    k.I(f"s_add_u32 s{sNA2}, s{sNA}, 2")
    k.I(f"v_and_b32 v{vL}, 63, v0")
    k.I(f"v_lshrrev_b32 v{vT0}, 6, v0")
    k.I("s_nop 0")
    k.I(f"v_readfirstlane_b32 s{sW}, v{vT0}")
    k.I("s_nop 3")
    k.I(f"s_and_b32 s{sR}, s{sW}, 1")
    k.I(f"s_lshr_b32 s{sCc}, s{sW}, 1")
    k.I(f"s_lshl_b32 s{sC16}, s{sCc}, 14")
    k.I(f"s_lshl_b32 s{sWb}, s{sCc}, 13")
    k.I(f"s_lshl_b32 s{sA}, s{sR}, 12")
    k.I(f"s_add_u32 s{sWb}, s{sWb}, s{sA}")
    k.I("s_waitcnt lgkmcnt(0)")
    k.I(f"s_lshl_b32 s{sA}, s{sH}, 19")
    for D, off in ((S_K, KW_OFF), (S_V, VT_OFF), (S_Q, QW_OFF)):
        k.I(f"s_add_u32 s{sB}, s{sA}, {hex(off)}")
        k.I(f"s_add_u32 s{D}, s60, s{sB}")
        k.I(f"s_addc_u32 s{D+1}, s61, 0")
        k.I(f"s_mov_b32 s{D+2}, {hex(512*1024)}")
        k.I(f"s_mov_b32 s{D+3}, 0x00020000")
    srd(k, S_C, 60, 61, 16 * MB, CTX_OFF)
    k.I(f"v_and_b32 v{vT0}, 31, v{vL}")
    k.I(f"v_lshrrev_b32 v{vT1}, 5, v{vL}")
    k.I(f"v_and_b32 v{vT2}, 15, v{vT0}")
    k.I(f"v_xor_b32 v{vT2}, v{vT2}, v{vT1}")
    k.I(f"v_lshlrev_b32 v{vT2}, 4, v{vT2}")
    k.I(f"v_lshl_add_u32 v{vT2}, v{vT0}, 8, v{vT2}")
    k.I(f"s_lshl_b32 s{sA}, s{sCc}, 13")
    k.I(f"v_add_u32 v{vT2}, s{sA}, v{vT2}")
    for ks in range(8):
        k.I(f"v_xor_b32 v{vKrd+ks}, {32*ks}, v{vT2}")
    k.I(f"v_bfe_u32 v{vT2}, v{vT0}, 2, 2")
    k.I(f"v_xor_b32 v{vT2}, v{vT2}, v{vT1}")
    k.I(f"v_lshlrev_b32 v{vT2}, 4, v{vT2}")
    k.I(f"v_lshl_add_u32 v{vT2}, v{vT0}, 6, v{vT2}")
    k.I(f"s_add_u32 s{sA}, s{sA}, {VRING}")
    k.I(f"v_add_u32 v{vVrd}, s{sA}, v{vT2}")
    k.I(f"v_xor_b32 v{vVrd+1}, 32, v{vVrd}")
    k.I(f"v_lshrrev_b32 v{vT2}, 4, v{vL}")
    k.I(f"v_and_b32 v{vT3}, 15, v{vL}")
    k.I(f"v_xor_b32 v{vT3}, v{vT3}, v{vT2}")
    k.I(f"v_lshlrev_b32 v{vT3}, 4, v{vT3}")
    k.I(f"v_lshl_add_u32 v{vT3}, v{vT2}, 8, v{vT3}")
    k.I(f"s_lshl_b32 s{sA}, s{sR}, 12")
    k.I(f"v_add_u32 v{vT3}, s{sA}, v{vT3}")
    for i in range(4):
        k.I(f"v_xor_b32 v{vKdma+i}, {64*i}, v{vT3}")
    k.I(f"v_and_b32 v{vT3}, 3, v{vL}")
    k.I(f"v_xor_b32 v{vT3}, v{vT3}, v{vT2}")
    k.I(f"v_lshlrev_b32 v{vT3}, 4, v{vT3}")
    k.I(f"v_lshrrev_b32 v{vT2}, 2, v{vL}")
    k.I(f"v_lshl_add_u32 v{vT3}, v{vT2}, 6, v{vT3}")
    k.I(f"v_add_u32 v{vVdma}, s{sA}, v{vT3}")
    k.I(f"s_lshl_b32 s{sA}, s{sR}, 6")
    k.I(f"s_lshl_b32 s{sB}, s{sCc}, 6")
    k.I(f"s_sub_u32 s{sA}, s{sA}, s{sB}")
    k.I(f"v_lshlrev_b32 v{vT2}, 2, v{vT1}")
    k.I(f"v_sub_u32 v{vT2}, v{vT0}, v{vT2}")
    k.I(f"v_add_u32 v{vDq0}, s{sA}, v{vT2}")
    k.I(f"v_add_u32 v{vDq0+1}, 32, v{vDq0}")
    k.I(f"v_mov_b32 v{vNB}, {NEGBIG}")
    k.I(f"s_lshl_b32 s{sA}, s{sR}, 6")
    k.I(f"v_add_u32 v{vT2}, s{sA}, v{vT0}")
    k.I(f"v_lshlrev_b32 v{vT3}, 4, v{vT1}")
    k.I(f"v_lshl_add_u32 v{vQoff}, v{vT2}, 8, v{vT3}")
    k.I(f"v_lshl_add_u32 v{vCoff}, v{vT2}, 13, v{vT3}")
    k.I(f"s_lshl_b32 s{sA}, s{sH}, 8")
    k.I(f"v_add_u32 v{vCoff}, s{sA}, v{vCoff}")
    k.I(f"s_lshl_b32 s{sA}, s{sW}, 9")
    k.I(f"s_add_u32 s{sA}, s{sA}, {MREG}")
    k.I(f"v_lshlrev_b32 v{vMst}, 3, v{vT0}")
    k.I(f"v_add_u32 v{vMst}, s{sA}, v{vMst}")
    k.I(f"s_lshl_b32 s{sA}, s{sW}, 13")
    k.I(f"s_add_u32 s{sA}, s{sA}, {MREG}")
    k.I(f"v_lshlrev_b32 v{vMo}, 4, v{vL}")
    k.I(f"v_add_u32 v{vMo}, s{sA}, v{vMo}")

    def qloads(sTile):
        k.I(f"s_lshl_b32 s{sA}, s{sTile}, 15")
        for ks in range(8):
            k.I(f"buffer_load_dwordx4 {a(aQ+ks*4,4)}, v{vQoff}, s[{S_Q}:{S_Q+3}], s{sA} offen offset:{ks*32}")
        k.I(f"s_add_u32 s{sA}, s{sA}, 8192")
        for ks in range(8):
            k.I(f"buffer_load_dwordx4 {a(aQ+(8+ks)*4,4)}, v{vQoff}, s[{S_Q}:{S_Q+3}], s{sA} offen offset:{ks*32}")

    def dma_items():
        it = []
        S = lambda t: it.append((t, 4))
        S(f"s_sub_u32 s{sB}, s{sG}, s{sNA2}")
        S(f"s_cmp_lt_u32 s{sG}, s{sNA}")
        S(f"s_cselect_b32 s{sA}, s{sG}, s{sB}")
        S(f"s_cselect_b32 s{sLim}, s{sNA}, s{sNB}")
        S(f"s_lshr_b32 s{sOff}, s{sA}, 1")
        S(f"s_lshl_b32 s{sOff}, s{sOff}, 15")
        S(f"s_and_b32 s{sB}, s{sA}, 1")
        S(f"s_lshl_b32 s{sB}, s{sB}, 13")
        S(f"s_add_u32 s{sOff}, s{sOff}, s{sB}")
        S(f"s_add_u32 s{sOff}, s{sOff}, s{sC16}")
        S(f"s_cmp_lt_u32 s{sA}, s{sLim}")
        S(f"s_cselect_b32 s{sOff}, s{sOff}, {hex(BIGOFF)}")
        S(f"s_add_u32 m0, s{sSlot}, s{sWb}")
        S(f"s_add_u32 s{sG}, s{sG}, 1")
        for i in range(4):
            it.append((f"buffer_load_dwordx4 v{vKdma+i}, s[{S_K}:{S_K+3}], s{sOff} offen offset:{1024*i} lds", 8))
        S(f"s_add_u32 m0, m0, {VRING}")
        S(f"s_add_u32 s{sSlot}, s{sSlot}, 16384")
        for i in range(4):
            it.append((f"buffer_load_dwordx4 v{vVdma}, s[{S_V}:{S_V+3}], s{sK2} offen offset:{1024*i} lds", 8))
        S(f"s_and_b32 s{sSlot}, s{sSlot}, 0xffff")
        S(f"s_mov_b32 s{sK2}, s{sK1}")
        S(f"s_mov_b32 s{sK1}, s{sOff}")
        return it

    def head(vm=16):
        k.I(f"s_waitcnt vmcnt({vm}) lgkmcnt(0)")
        k.I("s_barrier")

    def kreads(odd):
        return [(f"ds_read_b128 {v(vKf+4*ks,4)}, v{vKrd+ks} offset:{16384*odd}", 4) for ks in range(8)]
    def vreads(odd):
        return [(f"ds_read_b128 {v(vVf+4*(dt*2+kk),4)}, v{vVrd+kk} offset:{16384*odd+2048*dt}", 4) for kk in range(2) for dt in range(4)]
    def toggle():
        for r in list(range(vKrd, vKrd + 8)) + [vVrd, vVrd + 1]:
            k.I(f"v_xor_b32 v{r}, 0x8000, v{r}")

    def qk_mfmas(buf):
        out = []
        for ks in range(8):
            for qt in range(2):
                d = v(SB[buf] + 16 * qt, 16)
                c = v(vNegm + 16 * qt, 16) if ks == 0 else d
                out.append(f"v_mfma_f32_32x32x16_bf16 {d}, {v(vKf+4*ks,4)}, {a(aQ+(qt*8+ks)*4,4)}, {c}")
        return out
    def pv_mfmas(kk):
        out = []
        for dt in range(4):
            for qt in range(2):
                d = a(aO + (qt * 4 + dt) * 16, 16)
                out.append(f"v_mfma_f32_32x32x16_bf16 {d}, {v(vVf+4*(dt*2+kk),4)}, {v(vP+8*qt+4*kk,4)}, {d}")
        return out

    def exp_items(buf, kk):
        it = []
        for qt in range(2):
            b = SB[buf] + 16 * qt + 8 * kk
            for x in range(4):
                r0, r1 = b + 2 * x, b + 2 * x + 1
                it.append((f"v_exp_f32 v{r0}, v{r0}", 8))
                it.append((f"v_exp_f32 v{r1}, v{r1}", 8))
                it.append((f"v_add_f32 v{vLs+qt}, v{vLs+qt}, v{r0}", 4))
                it.append((f"v_add_f32 v{vLs+qt}, v{vLs+qt}, v{r1}", 4))
                it.append((f"v_cvt_pk_bf16_f32 v{vP+8*qt+4*kk+x}, v{r0}, v{r1}", 4))
        return it

    def mask_items(buf, moff_sgpr=None, moff_imm=0):
        it = []
        for qt in range(2):
            if moff_sgpr is not None:
                it.append((f"v_add_u32 v{vDq+qt}, s{moff_sgpr}, v{vDq0+qt}", 4))
            else:
                it.append((f"v_add_u32 v{vDq+qt}, {moff_imm}, v{vDq0+qt}", 4))
        seq = [(qt, r) for qt in range(2) for r in range(16)]
        def cmp_(i):
            qt, r = seq[i]
            return (f"v_cmp_ge_i32 s[{sMk+2*(i%4)}:{sMk+2*(i%4)+1}], v{vDq+qt}, {8*(r//4)+r%4}", 4)
        def cnd(i):
            qt, r = seq[i]
            reg = SB[buf] + 16 * qt + r
            return (f"v_cndmask_b32 v{reg}, v{vNB}, v{reg}, s[{sMk+2*(i%4)}:{sMk+2*(i%4)+1}]", 4)
        for i in range(3): it.append(cmp_(i))
        for i in range(32):
            if i + 3 < 32: it.append(cmp_(i + 3))
            else: it.append(("s_nop 0", 4))
            it.append(cnd(i))
        return it

    def max_items(buf):
        it = []
        for qt in range(2):
            b = SB[buf] + 16 * qt
            m = vMx + qt
            it.append((f"v_max3_f32 v{m}, v{b}, v{b+1}, v{b+2}", 4))
            for x in range(6):
                it.append((f"v_max3_f32 v{m}, v{m}, v{b+3+2*x}, v{b+4+2*x}", 4))
            it.append((f"v_max_f32 v{m}, v{m}, v{b+15}", 4))
        it.append((f"v_max_f32 v{vT0}, v{vMx}, v{vMx+1}", 4))
        it.append((f"v_cmp_ge_f32 vcc, v{vT0}, v{vThr}", 4))
        return it

    def slow_path(buf, lab_back):
        k.nop(12)
        for qt in range(2):
            m = vMx + qt
            k.I(f"v_mov_b32 v{vT0}, v{m}")
            k.I("s_nop 1")
            k.I(f"v_permlane32_swap_b32 v{vT0}, v{m}")
            k.I(f"v_max_f32 v{m}, v{m}, v{vT0}")
            k.I(f"v_max_f32 v{m}, v{m}, v{vFloor}")
            k.I(f"v_max_f32 v{vT1}, 0, v{m}")
            k.I(f"v_exp_f32 v{vT1}, -v{vT1}")
            for r in range(16):
                k.I(f"v_sub_f32 v{SB[buf]+16*qt+r}, v{SB[buf]+16*qt+r}, v{m}")
            for r in range(16):
                k.I(f"v_sub_f32 v{vNegm+16*qt+r}, v{vNegm+16*qt+r}, v{m}")
            k.I(f"v_mul_f32 v{vLs+qt}, v{vLs+qt}, v{vT1}")
            for r in range(64):
                ar = aO + qt * 64 + r
                t = vTmp + (r % 8)
                k.I(f"v_accvgpr_read_b32 v{t}, a{ar}")
                k.I(f"v_mul_f32 v{t}, v{t}, v{vT1}")
                k.I(f"v_accvgpr_write_b32 a{ar}, v{t}")
        k.I(f"v_mov_b32 v{vThr}, {THR}")
        k.I(f"v_mov_b32 v{vFloor}, 0")
        k.I("s_nop 1")
        k.I(f"s_branch {lab_back}")

    slow_blocks = []
    def check_branch(buf):
        ls = k.newlabel("slow"); lb = k.newlabel("back")
        k.I(f"s_cbranch_vccnz {ls}")
        k.L(lb)
        slow_blocks.append((buf, ls, lb))

    def E(items, e):
        return [(t, c, e) for (t, c) in items]

    def body(odd, mask_next=None, last=False):
        cur = odd; nxt = 1 - odd
        head()
        mf = []
        if not last:
            mf += qk_mfmas(nxt)
        nq = len(mf)
        pv0 = pv_mfmas(0); pv1 = pv_mfmas(1)
        pv0[0] = ["s_waitcnt lgkmcnt(0)", pv0[0]] if True else pv0[0]
        mf += pv0 + pv1
        e0 = exp_items(cur, 0); e1 = exp_items(cur, 1)
        if last:
            for t, c in dma_items(): k.I(t)
            for t, c in vreads(odd): k.I(t)
            qloads(sTn)
            for t, c in e0: k.I(t)
            k.I("s_nop 1")
            streams = [dict(items=E(e1, 0))]
            schedule(k, pv0, streams)
            k.I("s_nop 1")
            for m in pv1: k.I(m)
            if odd: toggle()
            return
        streams = [dict(items=E(vreads(odd), 0), maxper=2),
                   dict(items=E(e0, 0) + E(e1, 0)),
                   dict(items=E(dma_items(), 0), maxper=3)]
        n_e0 = len(e0)
        st_e = dict(items=E(e0, 0))
        schedule(k, mf[:nq], [streams[0], st_e, streams[2]])
        k.I("s_nop 1")
        st_k = dict(items=E(kreads(odd), 0), maxper=2)
        schedule(k, pv0, [st_k, dict(items=E(e1, 0))])
        k.I("s_nop 1")
        mi = []
        if mask_next is not None:
            mi += mask_items(nxt, moff_imm=mask_next)
        mi += max_items(nxt)
        schedule(k, pv1, [dict(items=E(mi, 0))])
        if odd: toggle()
        check_branch(nxt)

    qloads(sT)
    k.I(f"s_mov_b32 s{sG}, 0")
    k.I(f"s_mov_b32 s{sSlot}, 0")
    k.I(f"s_mov_b32 s{sK1}, {hex(BIGOFF)}")
    k.I(f"s_mov_b32 s{sK2}, {hex(BIGOFF)}")
    k.I(f"s_mov_b32 s{sTileIdx}, 0")
    for _ in range(3):
        for t, c in dma_items(): k.I(t)

    k.L("L_attn_tile")
    for r in range(128):
        k.I(f"v_accvgpr_write_b32 a{aO+r}, 0")
    for r in range(32):
        k.I(f"v_mov_b32 v{vNegm+r}, 0")
    k.I(f"v_mov_b32 v{vLs}, 0")
    k.I(f"v_mov_b32 v{vLs+1}, 0")
    k.I(f"v_mov_b32 v{vThr}, {NEGBIG}")
    k.I(f"v_mov_b32 v{vFloor}, {FLOOR0}")
    head()
    for t, c in dma_items(): k.I(t)
    for t, c in kreads(0): k.I(t)
    head(vm=8)
    for t, c in dma_items(): k.I(t)
    for m in qk_mfmas(0): k.I(m)
    for t, c in kreads(1): k.I(t)
    k.I(f"s_lshl_b32 s{sMo}, s{sT}, 7")
    k.nop(6)
    for t, c in mask_items(0, moff_sgpr=sMo): k.I(t)
    for t, c in max_items(0): k.I(t)
    toggle()
    check_branch(0)
    k.I(f"s_cmp_eq_u32 s{sT}, 0")
    k.I("s_cbranch_scc1 L_attn_tail")
    k.I(f"s_sub_u32 s{sCnt}, s{sT}, 1")
    k.L("L_attn_loop")
    k.I(f"s_cmp_eq_u32 s{sCnt}, 0")
    k.I("s_cbranch_scc1 L_attn_pretail")
    body(0); body(1)
    k.I(f"s_sub_u32 s{sCnt}, s{sCnt}, 1")
    k.I("s_branch L_attn_loop")
    k.L("L_attn_pretail")
    body(0); body(1, mask_next=0)
    k.L("L_attn_tail")
    body(0, mask_next=-32); body(1, last=True)

    k.nop(12)
    for qt in range(2):
        k.I(f"v_mov_b32 v{vT0}, v{vLs+qt}")
        k.I("s_nop 1")
        k.I(f"v_permlane32_swap_b32 v{vT0}, v{vLs+qt}")
        k.I(f"v_add_f32 v{vTmp+2*qt+1}, v{vLs+qt}, v{vT0}")
        k.I(f"v_sub_f32 v{vTmp+2*qt}, 0, v{vNegm+16*qt}")
    for qt in range(2):
        k.I(f"ds_write_b64 v{vMst}, {v(vTmp+2*qt,2)} offset:{256*qt}")
    k.I(f"v_xor_b32 v{vT3}, 1024, v{vMst}")
    k.I("s_waitcnt lgkmcnt(0)")
    k.I("s_barrier")
    for qt in range(2):
        k.I(f"ds_read_b64 {v(vTmp+4+2*qt,2)}, v{vT3} offset:{256*qt}")
    k.I("s_waitcnt lgkmcnt(0)")
    k.I("s_barrier")
    for qt in range(2):
        mo, lo, mp, lp = vTmp + 2 * qt, vTmp + 2 * qt + 1, vTmp + 4 + 2 * qt, vTmp + 5 + 2 * qt
        k.I(f"v_max_f32 v{vT0}, v{mo}, v{mp}")
        k.I(f"v_sub_f32 v{mo}, v{mo}, v{vT0}")
        k.I(f"v_sub_f32 v{mp}, v{mp}, v{vT0}")
        k.I(f"v_exp_f32 v{mo}, v{mo}")
        k.I(f"v_exp_f32 v{mp}, v{mp}")
        k.I("s_nop 0")
        k.I(f"v_mul_f32 v{lo}, v{lo}, v{mo}")
        k.I(f"v_fma_f32 v{lo}, v{lp}, v{mp}, v{lo}")
        k.I(f"v_rcp_f32 v{lo}, v{lo}")
        k.I("s_nop 0")
        k.I(f"v_mul_f32 v{vMx+qt}, v{mo}, v{lo}")
        k.I(f"v_mul_f32 v{vDq+qt}, v{mp}, v{lo}")
    k.I(f"v_xor_b32 v{vT3}, 16384, v{vMo}")
    k.I(f"s_lshl_b32 s{sA}, s{sT}, 20")
    k.I(f"s_cmp_eq_u32 s{sCc}, 1")
    k.I("s_cbranch_scc1 L_attn_merge1")
    for c in range(2):
        if c == 1:
            k.L("L_attn_merge1")
        keep = (0, 1) if c == 0 else (2, 3)
        send = (2, 3) if c == 0 else (0, 1)
        for qt in range(2):
            for ti, dt in enumerate(send):
                for q4 in range(4):
                    k.I(f"ds_write_b128 v{vMo}, {a(aO+(qt*4+dt)*16+4*q4,4)} offset:{(ti*4+q4)*1024}")
            k.I("s_waitcnt lgkmcnt(0)")
            k.I("s_barrier")
            R = SB[0]
            for i in range(8):
                k.I(f"ds_read_b128 {v(R+4*i,4)}, v{vT3} offset:{i*1024}")
            k.I("s_waitcnt lgkmcnt(0)")
            k.I("s_barrier")
            PK = SB[1]
            for ti, dt in enumerate(keep):
                for r in range(16):
                    t = vTmp + (r % 2)
                    k.I(f"v_accvgpr_read_b32 v{t}, a{aO+(qt*4+dt)*16+r}")
                    k.I(f"v_mul_f32 v{t}, v{t}, v{vMx+qt}")
                    k.I(f"v_fma_f32 v{t}, v{R+16*ti+r}, v{vDq+qt}, v{t}")
                    if r % 2 == 1:
                        k.I(f"v_cvt_pk_bf16_f32 v{PK+8*ti+r//2}, v{vTmp}, v{vTmp+1}")
            k.I("s_nop 1")
            for ti, dt in enumerate(keep):
                for jp in range(2):
                    b = PK + 8 * ti + 4 * jp
                    k.I(f"v_permlane32_swap_b32 v{b}, v{b+2}")
                    k.I(f"v_permlane32_swap_b32 v{b+1}, v{b+3}")
            if qt == 1:
                k.I(f"s_add_u32 s{sA}, s{sA}, {32*8192}")
            for ti, dt in enumerate(keep):
                for jp in range(2):
                    b = PK + 8 * ti + 4 * jp
                    k.I(f"buffer_store_dwordx4 {v(b,4)}, v{vCoff}, s[{S_C}:{S_C+3}], s{sA} offen offset:{64*dt+32*jp}")
            k.I("s_nop 1")
        if c == 0:
            k.I("s_branch L_attn_merged")
    k.L("L_attn_merged")
    k.I(f"s_cmp_eq_u32 s{sTileIdx}, 1")
    k.I("s_cbranch_scc1 L_attn_done")
    k.I(f"s_mov_b32 s{sTileIdx}, 1")
    k.I(f"s_mov_b32 s{sT}, s{sTn}")
    k.I("s_branch L_attn_tile")
    k.L("L_attn_done")
    k.I("s_endpgm")
    for buf, ls, lb in slow_blocks:
        k.L(ls)
        slow_path(buf, lb)
    k.meta = dict(vgpr=NV, agpr=192, sgpr=72)
    return k
```

```python
from asmlib import *
from k01 import *

def gen_outgemm():
    k = Kern("outg")
    S_A = 8; S_B = 12; S_P = 16
    sW = 24; sRb = 25; sCg = 26; sSp = 27; sK0 = 28; sKl = 29; sT = 30; sT2 = 31; sWb = 32; sSo = 33; sStr = 34
    vL = 1; vT = 2; vT2 = 3; vT3 = 4
    vRd = 5
    vDma = 9; vAo = 10; vSt = 11
    vAcc = 16
    vA = 80
    vFr = 144; NFR = 6
    NV = vFr + 4 * NFR
    NST = 11
    k.L("outg_kernel")
    k.I("s_cmp_ge_u32 s2, 256")
    k.I("s_cbranch_scc1 L_outg_done")
    k.I("s_load_dwordx2 s[52:53], s[0:1], 40")
    k.I("s_load_dwordx2 s[54:55], s[0:1], 64")
    k.I("s_load_dwordx2 s[60:61], s[0:1], 88")
    k.I(f"s_and_b32 s{sSp}, s2, 7")
    k.I("s_lshr_b32 s63, s2, 3")
    k.I(f"s_and_b32 s{sRb}, s63, 7")
    k.I(f"s_lshr_b32 s{sCg}, s63, 3")
    k.I(f"s_mul_i32 s{sK0}, s{sSp}, 22")
    k.I(f"s_mul_i32 s{sT}, s{sSp}, 21")
    k.I(f"s_add_u32 s{sT}, s{sT}, 2")
    k.I(f"s_cmp_lt_u32 s{sSp}, 2")
    k.I(f"s_cselect_b32 s{sK0}, s{sK0}, s{sT}")
    k.I(f"s_cselect_b32 s{sKl}, 22, 21")
    k.I(f"s_sub_u32 s{sT}, s{sSp}, 6")
    k.I(f"s_mul_i32 s{sT}, s{sT}, 22")
    k.I(f"s_cmp_ge_u32 s{sSp}, 6")
    k.I(f"s_cselect_b32 s{sK0}, s{sT}, s{sK0}")
    k.I(f"s_cmp_eq_u32 s{sSp}, 6")
    k.I(f"s_cselect_b32 s{sKl}, 22, s{sKl}")
    k.I(f"s_lshl_b32 s{sK0}, s{sK0}, 5")
    k.I(f"s_lshl_b32 s{sKl}, s{sKl}, 5")
    k.I(f"v_and_b32 v{vL}, 63, v0")
    k.I(f"v_lshrrev_b32 v{vT}, 6, v0")
    k.I("s_nop 0")
    k.I(f"v_readfirstlane_b32 s{sW}, v{vT}")
    k.I("s_waitcnt lgkmcnt(0)")
    k.I(f"s_add_u32 s40, s60, {hex(CTX_OFF)}")
    k.I("s_addc_u32 s41, s61, 0")
    k.I(f"s_add_u32 s42, s60, {hex(H_OFF)}")
    k.I("s_addc_u32 s43, s61, 0")
    k.I(f"s_mov_b32 s44, {hex(16*MB)}")
    k.I(f"s_mov_b32 s45, {2048*2752}")
    k.I("s_mov_b32 s46, 8192")
    k.I("s_mov_b32 s47, 2752")
    k.I(f"s_cmp_ge_u32 s{sSp}, 6")
    k.I(f"s_cselect_b32 s{S_A}, s42, s40")
    k.I(f"s_cselect_b32 s{S_A+1}, s43, s41")
    k.I(f"s_cselect_b32 s{S_A+2}, s45, s44")
    k.I(f"s_cselect_b32 s{sStr}, s47, s46")
    k.I(f"s_cselect_b32 s{S_B}, s54, s52")
    k.I(f"s_cselect_b32 s{S_B+1}, s55, s53")
    k.I(f"s_mov_b32 s{S_A+3}, 0x00020000")
    k.I(f"s_add_u32 s{sT}, s{sK0}, s{sKl}")
    k.I(f"s_lshl_b32 s{S_B+2}, s{sT}, 10")
    k.I(f"s_mov_b32 s{S_B+3}, 0x00020000")
    srd(k, S_P, 60, 61, 32 * MB, PART_OFF)
    k.I(f"s_lshl_b32 s{sT}, s{sRb}, 8")
    k.I(f"s_lshl_b32 s{sT2}, s{sW}, 5")
    k.I(f"s_add_u32 s{sT}, s{sT}, s{sT2}")
    k.I(f"v_and_b32 v{vT}, 31, v{vL}")
    k.I(f"v_add_u32 v{vT}, s{sT}, v{vT}")
    k.I(f"v_lshrrev_b32 v{vT2}, 5, v{vL}")
    k.I(f"v_lshlrev_b32 v{vT2}, 4, v{vT2}")
    k.I(f"v_mul_lo_u32 v{vAo}, v{vT}, s{sStr}")
    k.I(f"v_add_u32 v{vAo}, v{vAo}, v{vT2}")
    k.I(f"s_lshl_b32 s{sT}, s{sK0}, 1")
    k.I(f"v_add_u32 v{vAo}, s{sT}, v{vAo}")
    k.I(f"v_lshl_add_u32 v{vSt}, v{vT}, 11, v{vT2}")
    k.I(f"s_lshl_b32 s{sT}, s{sSp}, 22")
    k.I(f"s_lshl_b32 s{sT2}, s{sCg}, 9")
    k.I(f"s_add_u32 s{sT}, s{sT}, s{sT2}")
    k.I(f"v_add_u32 v{vSt}, s{sT}, v{vSt}")
    k.I(f"v_lshrrev_b32 v{vT}, 4, v{vL}")
    k.I(f"v_lshlrev_b32 v{vT2}, 2, v{vT}")
    k.I(f"v_and_b32 v{vT3}, 15, v{vL}")
    k.I(f"v_xor_b32 v{vT3}, v{vT3}, v{vT2}")
    k.I(f"v_lshlrev_b32 v{vT3}, 4, v{vT3}")
    k.I(f"v_lshl_add_u32 v{vDma}, v{vT}, 10, v{vT3}")
    k.I(f"s_lshl_b32 s{sT}, s{sW}, 13")
    k.I(f"v_add_u32 v{vDma}, s{sT}, v{vDma}")
    k.I(f"s_lshl_b32 s{sSo}, s{sK0}, 10")
    k.I(f"s_lshl_b32 s{sT}, s{sCg}, 8")
    k.I(f"s_add_u32 s{sSo}, s{sSo}, s{sT}")
    k.I(f"s_lshl_b32 s{sWb}, s{sW}, 11")
    k.I(f"v_lshrrev_b32 v{vT}, 5, v{vL}")
    k.I(f"v_lshlrev_b32 v{vT}, 3, v{vT}")
    k.I(f"v_bfe_u32 v{vT2}, v{vL}, 2, 2")
    k.I(f"v_add_u32 v{vT}, v{vT}, v{vT2}")
    k.I(f"v_lshlrev_b32 v{vRd}, 8, v{vT}")
    k.I(f"v_lshl_add_u32 v{vRd}, v{vT2}, 6, v{vRd}")
    k.I(f"v_bfe_u32 v{vT}, v{vL}, 4, 1")
    k.I(f"v_lshl_add_u32 v{vRd}, v{vT}, 5, v{vRd}")
    k.I(f"v_and_b32 v{vT}, 3, v{vL}")
    k.I(f"v_lshl_add_u32 v{vRd}, v{vT}, 3, v{vRd}")
    for t in range(1, 4):
        k.I(f"v_xor_b32 v{vRd+t}, {64*t}, v{vRd}")

    def issue(st):
        slot = st % 4
        k.I(f"s_add_u32 s{sT}, s{sSo}, {st*65536}")
        k.I(f"s_add_u32 m0, s{sWb}, {slot*16384}")
        k.I(f"s_add_u32 s{sT2}, s{sT}, 4096")
        k.I(f"buffer_load_dwordx4 v{vDma}, s[{S_B}:{S_B+3}], s{sT} offen lds")
        k.I(f"s_add_u32 m0, s{sWb}, {slot*16384+1024}")
        k.I("s_nop 0")
        k.I(f"buffer_load_dwordx4 v{vDma}, s[{S_B}:{S_B+3}], s{sT2} offen lds")
        for ks in range(4):
            k.I(f"buffer_load_dwordx4 {v(vA+16*slot+4*ks,4)}, v{vAo}, s[{S_A}:{S_A+3}], 0 offen offset:{st*128+ks*32}")

    for st in range(3):
        issue(st)
    for st in range(NST):
        later = min(NST - 1, st + 2) - st
        k.I(f"s_waitcnt vmcnt({6*later})")
        k.I("s_barrier")
        if st + 3 < NST:
            issue(st + 3)
        slot = st % 4
        seq = [(ks, t) for ks in range(4) for t in range(4)]
        issued = 0
        def rd(i):
            ks, t = seq[i]
            fr = vFr + 4 * (i % NFR)
            off = slot * 16384 + ks * 4096
            k.I(f"ds_read_b64_tr_b16 {v(fr,2)}, v{vRd+t} offset:{off}")
            k.I(f"ds_read_b64_tr_b16 {v(fr+2,2)}, v{vRd+t} offset:{off+1024}")
        for i in range(NFR - 1):
            rd(i); issued += 1
        for i in range(16):
            ks, t = seq[i]
            fr = vFr + 4 * (i % NFR)
            k.I(f"s_waitcnt lgkmcnt({2*(issued-1-i)})")
            acc = v(vAcc + 16 * t, 16)
            c = "0" if (st == 0 and ks == 0) else acc
            k.I(f"v_mfma_f32_32x32x16_bf16 {acc}, {v(fr,4)}, {v(vA+16*slot+4*ks,4)}, {c}")
            if issued < 16:
                rd(issued); issued += 1
    k.nop(12)
    for t in range(4):
        for j in range(4):
            k.I(f"buffer_store_dwordx4 {v(vAcc+16*t+4*j,4)}, v{vSt}, s[{S_P}:{S_P+3}], 0 offen offset:{128*t+32*j}")
    k.L("L_outg_done")
    k.I("s_endpgm")
    k.meta = dict(vgpr=NV, agpr=0, sgpr=72)
    return k

def gen_final():
    k = Kern("final")
    k.L("final_kernel")
    k.I("s_cmp_ge_u32 s2, 1024")
    k.I("s_cbranch_scc1 L_final_done")
    k.I("s_load_dwordx2 s[4:5], s[0:1], 0")
    k.I("s_load_dwordx2 s[6:7], s[0:1], 72")
    k.I("s_load_dwordx2 s[20:21], s[0:1], 88")
    k.I("s_lshl_b32 s3, s2, 8")
    k.I("v_add_u32 v1, s3, v0")
    k.I("v_lshlrev_b32 v2, 4, v1")
    k.I("v_lshlrev_b32 v3, 3, v1")
    k.I("s_waitcnt lgkmcnt(0)")
    srd(k, 8, 4, 5, 2 * MB)
    srd(k, 12, 6, 7, 2 * MB)
    srd(k, 16, 20, 21, 32 * MB, PART_OFF)
    for p in range(8):
        k.I(f"s_mov_b32 s22, {hex(p*4*MB)}")
        k.I(f"buffer_load_dwordx4 {v(8+4*p,4)}, v2, s[16:19], s22 offen")
    k.I("buffer_load_dwordx2 v[4:5], v3, s[8:11], 0 offen")
    k.I("s_waitcnt vmcnt(0)")
    k.I(f"s_mov_b32 s23, {f32bits(-1.4426950408889634)}")
    for e in range(4):
        for p in range(1, 6):
            k.I(f"v_add_f32 v{8+e}, v{8+e}, v{8+4*p+e}")
        k.I(f"v_add_f32 v{32+e}, v{32+e}, v{36+e}")
    for e in range(4):
        round_bf16(k, 8 + e, 8 + e)
        round_bf16(k, 32 + e, 32 + e)
    for e in range(4):
        k.I(f"v_mul_f32 v{40+e}, s23, v{32+e}")
    for e in range(4):
        k.I(f"v_exp_f32 v{40+e}, v{40+e}")
    k.I("s_nop 0")
    for e in range(4):
        k.I(f"v_add_f32 v{40+e}, 1.0, v{40+e}")
    for e in range(4):
        k.I(f"v_rcp_f32 v{40+e}, v{40+e}")
    k.I("s_nop 0")
    for e in range(4):
        k.I(f"v_mul_f32 v{40+e}, v{32+e}, v{40+e}")
    for e in range(4):
        round_bf16(k, 40 + e, 40 + e)
    for e in range(4):
        k.I(f"v_mul_f32 v{40+e}, v{8+e}, v{40+e}")
    for e in range(4):
        round_bf16(k, 40 + e, 40 + e)
    k.I("v_lshlrev_b32 v44, 16, v4")
    k.I("v_and_b32 v45, 0xffff0000, v4")
    k.I("v_lshlrev_b32 v46, 16, v5")
    k.I("v_and_b32 v47, 0xffff0000, v5")
    for e in range(4):
        k.I(f"v_add_f32 v{40+e}, v{44+e}, v{40+e}")
    k.I("v_cvt_pk_bf16_f32 v4, v40, v41")
    k.I("v_cvt_pk_bf16_f32 v5, v42, v43")
    k.I("buffer_store_dwordx2 v[4:5], v3, s[12:15], 0 offen")
    k.L("L_final_done")
    k.I("s_endpgm")
    k.meta = dict(vgpr=48, agpr=0, sgpr=32)
    return k
```

```python
import sys, os
sys.path.insert(0, os.path.dirname(__file__))
from asmlib import *
import k01

NAME = "recurrent_scan__compressed_kv_cla__dense_activation_relu__prompt"
OUT = f"cdna_kernels/{NAME}.s"

def build(kernels, out=OUT):
    hdr = []
    for k, label, grid, block, lds in kernels:
        hdr.append(f"; @launch kernel={label} grid=({grid},1,1) block=({block},1,1) lds={lds}")
    body = ['.amdgcn_target "amdgcn-amd-amdhsa--gfx950"', ".text"]
    seen = set()
    for k, label, grid, block, lds in kernels:
        if label in seen: continue
        seen.add(label)
        body.append(f".globl {label}")
        body.append(".p2align 8")
        body.append(f".type {label},@function")
        t = k.text()
        probs = check_hazards(t)
        for p in probs:
            print(f"HAZARD[{label}] {p}")
        body.append(t)
    body.append('.section .rodata,"a"')
    seen = set()
    for k, label, grid, block, lds in kernels:
        if label in seen: continue
        seen.add(label)
        m = k.meta
        acc = (m["vgpr"] + 3) // 4 * 4
        nfv = acc + m["agpr"] if m["agpr"] else m["vgpr"]
        body.append(".p2align 6")
        body.append(f".amdhsa_kernel {label}")
        body.append(f"  .amdhsa_next_free_vgpr {nfv}")
        body.append(f"  .amdhsa_next_free_sgpr {m['sgpr']}")
        body.append(f"  .amdhsa_accum_offset {acc}")
        body.append("  .amdhsa_group_segment_fixed_size 0")
        body.append("  .amdhsa_kernarg_size 96")
        body.append("  .amdhsa_user_sgpr_count 2")
        body.append("  .amdhsa_user_sgpr_kernarg_segment_ptr 1")
        body.append("  .amdhsa_system_sgpr_workgroup_id_x 1")
        body.append(".end_amdhsa_kernel")
    open(out, "w").write("\n".join(hdr + body) + "\n")

def main():
    ks = []
    ks.append((k01.gen_ln(), "ln_kernel", 512, 256, 0))
    ks.append((k01.gen_proj(), "proj_kernel", 256, 512, 65536))
    try:
        import k2
        ks.append((k2.gen_attn(), "attn_kernel", 256, 256, 163840))
    except ImportError:
        pass
    try:
        import k34
        ks.append((k34.gen_outgemm(), "outg_kernel", 256, 512, 65536))
        ks.append((k34.gen_final(), "final_kernel", 1024, 256, 0))
    except ImportError:
        pass
    build(ks)

if __name__ == "__main__":
    main()
```

```python
from asmlib import *

MB = 1 << 20
XN_OFF = 0
CKF_OFF = 2 * MB
QW_OFF = 16 * MB
KW_OFF = 32 * MB
VT_OFF = 48 * MB
H_OFF = 64 * MB
CTX_OFF = 80 * MB
PART_OFF = 96 * MB
WS_SIZE = 128 * MB
BIGOFF = 0x7FFFFFF0

QSCALE = 1.4426950408889634 / (128.0 ** 0.5)

import struct
def f32bits(x):
    return "0x%08x" % struct.unpack("<I", struct.pack("<f", x))[0]

def srd(k, d, base_lo, base_hi, size, add=0):
    if add:
        k.I(f"s_add_u32 s{d}, s{base_lo}, {hex(add)}")
        k.I(f"s_addc_u32 s{d+1}, s{base_hi}, 0")
    else:
        k.I(f"s_mov_b32 s{d}, s{base_lo}")
        k.I(f"s_mov_b32 s{d+1}, s{base_hi}")
    k.I(f"s_mov_b32 s{d+2}, {hex(size)}")
    k.I(f"s_mov_b32 s{d+3}, 0x00020000")

def wave_allreduce_add(k, vx, vt):
    for m in (0x041F, 0x081F, 0x101F, 0x201F, 0x401F):
        k.I(f"ds_swizzle_b32 v{vt}, v{vx} offset:{hex(m)}")
        k.I("s_waitcnt lgkmcnt(0)")
        k.I(f"v_add_f32 v{vx}, v{vx}, v{vt}")
    k.I(f"v_mov_b32 v{vt}, v{vx}")
    k.I("s_nop 1")
    k.I(f"v_permlane32_swap_b32 v{vt}, v{vx}")
    k.I(f"v_add_f32 v{vx}, v{vx}, v{vt}")

def round_bf16(k, vd, vs):
    k.I(f"v_cvt_pk_bf16_f32 v{vd}, v{vs}, v{vs}")
    k.I(f"v_and_b32 v{vd}, 0xffff0000, v{vd}")


def gen_ln():
    k = Kern("ln")
    k.L("ln_kernel")
    k.I("s_cmp_ge_u32 s2, 1024")
    k.I("s_cbranch_scc1 L_ln_done")
    k.I("s_load_dwordx4 s[4:7], s[0:1], 0")
    k.I("s_load_dwordx2 s[16:17], s[0:1], 88")
    k.I("v_lshrrev_b32 v1, 6, v0")
    k.I("v_and_b32 v2, 63, v0")
    k.I("s_and_b32 s3, s2, 511")
    k.I("s_lshl_b32 s3, s3, 2")
    k.I("v_add_u32 v1, s3, v1")
    k.I("v_lshlrev_b32 v3, 10, v1")
    k.I("v_lshl_add_u32 v3, v2, 4, v3")
    k.I("v_lshrrev_b32 v16, 5, v1")
    k.I("v_lshlrev_b32 v16, 15, v16")
    k.I("v_lshrrev_b32 v17, 1, v2")
    k.I("v_lshl_add_u32 v16, v17, 10, v16")
    k.I("v_and_b32 v17, 1, v2")
    k.I("v_lshl_add_u32 v16, v17, 9, v16")
    k.I("v_and_b32 v17, 31, v1")
    k.I("v_lshl_add_u32 v1, v17, 4, v16")
    k.I("s_waitcnt lgkmcnt(0)")
    k.I("s_cmp_ge_u32 s2, 512")
    k.I("s_cselect_b32 s8, s6, s4")
    k.I("s_cselect_b32 s9, s7, s5")
    k.I(f"s_mov_b32 s10, {hex(2*MB)}")
    k.I("s_mov_b32 s11, 0x00020000")
    k.I(f"s_cselect_b32 s18, {hex(CKF_OFF)}, {hex(XN_OFF)}")
    k.I("s_add_u32 s12, s16, s18")
    k.I("s_addc_u32 s13, s17, 0")
    k.I(f"s_mov_b32 s14, {hex(2*MB)}")
    k.I("s_mov_b32 s15, 0x00020000")
    k.I("buffer_load_dwordx4 v[4:7], v3, s[8:11], 0 offen")
    k.I("s_cmp_ge_u32 s2, 512")
    k.I("s_waitcnt vmcnt(0)")
    k.I("s_cbranch_scc1 L_ln_store")
    for i in range(4):
        k.I(f"v_lshlrev_b32 v{8+2*i}, 16, v{4+i}")
        k.I(f"v_and_b32 v{9+2*i}, 0xffff0000, v{4+i}")
    k.I("v_add_f32 v16, v8, v9")
    k.I("v_add_f32 v17, v10, v11")
    k.I("v_add_f32 v18, v12, v13")
    k.I("v_add_f32 v19, v14, v15")
    k.I("v_add_f32 v16, v16, v17")
    k.I("v_add_f32 v18, v18, v19")
    k.I("v_add_f32 v16, v16, v18")
    wave_allreduce_add(k, 16, 17)
    k.I(f"v_mul_f32 v16, {f32bits(1.0/512)}, v16")
    k.I("v_mov_b32 v18, 0")
    for i in range(8):
        k.I(f"v_sub_f32 v19, v{8+i}, v16")
        k.I("v_fmac_f32 v18, v19, v19")
    wave_allreduce_add(k, 18, 17)
    k.I(f"v_mul_f32 v18, {f32bits(1.0/512)}, v18")
    round_bf16(k, 16, 16)
    round_bf16(k, 18, 18)
    k.I(f"v_add_f32 v18, {f32bits(1e-5)}, v18")
    round_bf16(k, 18, 18)
    k.I("v_sqrt_f32 v18, v18")
    k.I("s_nop 0")
    round_bf16(k, 18, 18)
    k.I("v_rcp_f32 v19, v18")
    for i in range(8):
        k.I(f"v_sub_f32 v{8+i}, v{8+i}, v16")
    for i in range(4):
        k.I(f"v_cvt_pk_bf16_f32 v{4+i}, v{8+2*i}, v{9+2*i}")
    for i in range(4):
        k.I(f"v_lshlrev_b32 v{8+2*i}, 16, v{4+i}")
        k.I(f"v_and_b32 v{9+2*i}, 0xffff0000, v{4+i}")
    for i in range(8):
        k.I(f"v_mul_f32 v20, v{8+i}, v19")
        k.I(f"v_fma_f32 v21, -v20, v18, v{8+i}")
        k.I(f"v_fma_f32 v{8+i}, v21, v19, v20")
    for i in range(4):
        k.I(f"v_cvt_pk_bf16_f32 v{4+i}, v{8+2*i}, v{9+2*i}")
    k.L("L_ln_store")
    k.I("buffer_store_dwordx4 v[4:7], v1, s[12:15], 0 offen")
    k.L("L_ln_done")
    k.I("s_endpgm")
    k.meta = dict(vgpr=24, agpr=0, sgpr=24)
    return k

import os
PFL = set(os.environ.get("PROJ_FLAGS", "").split(","))
def gen_proj():
    k = Kern("proj")
    def stamp_dyn():
        if "stamp" not in PFL: return
        k.I("s_memtime s[80:81]")
        k.I("s_waitcnt lgkmcnt(0)")
        k.I("v_mov_b32 v125, s80")
        k.I("v_cmp_eq_u32 vcc, s82, v124")
        k.I("s_nop 1")
        k.I("v_cndmask_b32 v126, v126, v125, vcc")
        k.I("s_add_u32 s82, s82, 1")
    S_A = 8; S_WS = 12; S_BC = 16; S_BN = 20
    sPlo = 24; sPhi = 26; sSzHi = 28; sStrHi = 29
    sU = 30; sUend = 31; sWb = 32; sIsX = 33
    sSoC = 34; sS8C = 35; sS128C = 36
    sSoN = 37; sS8N = 38; sS128N = 39
    sT = 40; sT2 = 41; sM = 42
    sRb32 = 44; sOutU = 45
    sScale = 46
    sLo = 64; sSt0 = 65; sSt1 = 66; sSwap = 67; sPar = 68
    vL = 1; vT = 2; vT2 = 3; vT3 = 4
    vRd0 = 5; vRd1 = 6
    vDmaLo = 7; vDmaHi = 8; vDmaC = 9; vDmaN = 10; vL16 = 11
    vAcc = [12, 44]
    vPk = 76
    vFr = 92
    NFR = 8
    NV = vFr + NFR * 4
    AHEAD = int(os.environ.get("PROJ_AHEAD", "5"))
    BARPOS = 8

    k.L("proj_kernel")
    k.I("s_cmp_ge_u32 s2, 256")
    k.I("s_cbranch_scc1 L_proj_done")
    if "stamp" in PFL:
        k.I("s_mov_b32 s82, 0")
        k.I("v_mov_b32 v126, 0")
        k.I("v_and_b32 v124, 63, v0")
        k.I("s_memrealtime s[92:93]")
    stamp_dyn()
    k.I("s_load_dwordx4 s[52:55], s[0:1], 16")
    k.I("s_load_dwordx2 s[56:57], s[0:1], 32")
    k.I("s_load_dwordx2 s[58:59], s[0:1], 56")
    k.I("s_load_dwordx2 s[60:61], s[0:1], 88")
    k.I("s_and_b32 s62, s2, 7")
    k.I("s_lshr_b32 s63, s2, 3")
    k.I(f"s_and_b32 s{sRb32}, s63, 7")
    k.I("s_lshr_b32 s63, s63, 3")
    k.I("s_lshl_b32 s62, s62, 2")
    k.I("s_add_u32 s62, s62, s63")
    k.I("s_cmp_lt_u32 s62, 13")
    k.I(f"s_cselect_b32 s{sIsX}, 1, 0")
    k.I("s_sub_u32 s63, s62, 13")
    k.I("s_cselect_b32 s62, s62, s63")
    k.I(f"s_mul_i32 s{sU}, s62, 7")
    k.I(f"s_add_u32 s{sUend}, s{sU}, 7")
    k.I(f"s_cmp_eq_u32 s{sIsX}, 1")
    k.I("s_mov_b32 s63, 128")
    k.I("s_cselect_b32 s63, 86, s63")
    k.I(f"s_min_u32 s{sUend}, s{sUend}, s63")
    k.I(f"v_and_b32 v{vL}, 63, v0")
    k.I(f"v_lshrrev_b32 v{vT}, 6, v0")
    k.I(f"v_lshlrev_b32 v{vL16}, 4, v{vL}")
    k.I(f"v_readfirstlane_b32 s{sWb}, v{vT}")
    k.I("s_waitcnt lgkmcnt(0)")
    k.I(f"s_cmp_eq_u32 s{sIsX}, 1")
    k.I(f"s_cselect_b32 s{sPlo}, s52, s54")
    k.I(f"s_cselect_b32 s{sPlo+1}, s53, s55")
    k.I(f"s_cselect_b32 s{sPhi}, s58, s56")
    k.I(f"s_cselect_b32 s{sPhi+1}, s59, s57")
    k.I(f"s_mov_b32 s{sT}, {512*1376*2}")
    k.I(f"s_mov_b32 s{sT2}, {4*MB}")
    k.I(f"s_cselect_b32 s{sSzHi}, s{sT}, s{sT2}")
    k.I(f"s_mov_b32 s{sT}, 2752")
    k.I(f"s_mov_b32 s{sT2}, 8192")
    k.I(f"s_cselect_b32 s{sStrHi}, s{sT}, s{sT2}")
    k.I(f"s_cselect_b32 s{sT}, {hex(XN_OFF)}, {hex(CKF_OFF)}")
    k.I(f"s_add_u32 s{S_A}, s60, s{sT}")
    k.I(f"s_addc_u32 s{S_A+1}, s61, 0")
    k.I(f"s_mov_b32 s{S_A+2}, {hex(2*MB)}")
    k.I(f"s_mov_b32 s{S_A+3}, 0x00020000")
    srd(k, S_WS, 60, 61, WS_SIZE)
    k.I(f"s_lshl_b32 s{sRb32}, s{sRb32}, 3")
    k.I(f"s_add_u32 s{sRb32}, s{sRb32}, s{sWb}")
    k.I(f"v_lshrrev_b32 v{vT}, 3, v{vL}")
    k.I(f"s_lshl_b32 s{sT}, s{sWb}, 4")
    k.I(f"v_add_u32 v{vT}, s{sT}, v{vT}")
    k.I(f"v_and_b32 v{vT2}, 7, v{vL}")
    k.I(f"v_lshrrev_b32 v{vT3}, 2, v{vL}")
    k.I(f"v_and_b32 v{vT3}, 4, v{vT3}")
    k.I(f"v_xor_b32 v{vT2}, v{vT2}, v{vT3}")
    k.I(f"v_lshlrev_b32 v{vT2}, 4, v{vT2}")
    k.I(f"v_lshl_add_u32 v{vDmaLo}, v{vT}, 13, v{vT2}")
    k.I(f"v_mul_lo_u32 v{vDmaHi}, v{vT}, s{sStrHi}")
    k.I(f"v_add_u32 v{vDmaHi}, v{vDmaHi}, v{vT2}")
    k.I(f"v_lshrrev_b32 v{vT}, 5, v{vL}")
    k.I(f"v_lshlrev_b32 v{vT}, 3, v{vT}")
    k.I(f"v_bfe_u32 v{vT2}, v{vL}, 2, 2")
    k.I(f"v_add_u32 v{vT}, v{vT}, v{vT2}")
    k.I(f"v_lshlrev_b32 v{vRd0}, 7, v{vT}")
    k.I(f"v_bfe_u32 v{vT}, v{vL}, 3, 1")
    k.I(f"v_lshl_add_u32 v{vRd0}, v{vT}, 6, v{vRd0}")
    k.I(f"v_bfe_u32 v{vT}, v{vL}, 4, 1")
    k.I(f"v_lshl_add_u32 v{vRd0}, v{vT}, 5, v{vRd0}")
    k.I(f"v_and_b32 v{vT}, 3, v{vL}")
    k.I(f"v_lshl_add_u32 v{vRd0}, v{vT}, 3, v{vRd0}")
    k.I(f"v_xor_b32 v{vRd1}, 64, v{vRd0}")
    k.I(f"s_mov_b32 s{sSt0}, {hex(BIGOFF)}")
    k.I(f"s_mov_b32 s{sSt1}, {hex(BIGOFF)}")
    k.I(f"s_mov_b32 s{sSwap}, 0")
    k.I(f"s_mov_b32 s{sPar}, 0")
    k.I(f"s_mov_b32 s{sScale}, 1.0")
    k.I(f"s_mov_b32 s{sScale+1}, 1.0")
    k.I(f"s_mov_b32 s{sLo}, 0")
    k.I(f"s_lshl_b32 s{sWb}, s{sWb}, 11")

    def desc(su_expr_reg, D, so, s8, s128, vd):
        k.I(f"s_cmp_ge_u32 s{su_expr_reg}, 64")
        k.I(f"s_cselect_b32 s{D}, s{sPhi}, s{sPlo}")
        k.I(f"s_cselect_b32 s{D+1}, s{sPhi+1}, s{sPlo+1}")
        k.I(f"s_cselect_b32 s{D+2}, s{sSzHi}, {hex(4*MB)}")
        k.I(f"s_cselect_b32 s{s8}, s{sStrHi}, 8192")
        k.I(f"s_cselect_b64 s[{sM}:{sM+1}], -1, 0")
        k.I(f"s_mov_b32 s{D+3}, 0x00020000")
        k.I(f"v_cndmask_b32 v{vd}, v{vDmaLo}, v{vDmaHi}, s[{sM}:{sM+1}]")
        k.I(f"s_cmp_ge_u32 s{su_expr_reg}, s{sUend}")
        k.I(f"s_cselect_b32 s{D+2}, 0, s{D+2}")
        k.I(f"s_and_b32 s{so}, s{su_expr_reg}, 63")
        k.I(f"s_lshl_b32 s{so}, s{so}, 7")
        k.I(f"s_lshl_b32 s{s128}, s{s8}, 7")
        k.I(f"s_lshl_b32 s{s8}, s{s8}, 3")

    def dma(stage, slot, D, so, s8, s128, vd):
        k.I(f"s_mul_i32 s{sT}, s{s128}, {stage}")
        k.I(f"s_add_u32 s{sT}, s{sT}, s{so}")
        k.I(f"s_add_u32 m0, s{sWb}, {slot*16384}")
        k.I(f"s_add_u32 s{sT2}, s{sT}, s{s8}")
        k.I(f"buffer_load_dwordx4 v{vd}, s[{D}:{D+3}], s{sT} offen lds")
        k.I(f"s_add_u32 m0, s{sWb}, {slot*16384+1024}")
        k.I("s_nop 0")
        k.I(f"buffer_load_dwordx4 v{vd}, s[{D}:{D+3}], s{sT2} offen lds")

    desc(sU, S_BC, sSoC, sS8C, sS128C, vDmaC)
    dma(0, 0, S_BC, sSoC, sS8C, sS128C, vDmaC)
    k.I(f"s_lshl_b32 s62, s{sRb32}, 15")
    for ks in range(32):
        if ks and ks % 4 == 0:
            k.I("s_add_u32 s62, s62, 4096")
        k.I(f"buffer_load_dwordx4 {a(4*ks,4)}, v{vL16}, s[{S_A}:{S_A+3}], s62 offen offset:{(ks%4)*1024}")
    for st in range(1, 3):
        dma(st, st, S_BC, sSoC, sS8C, sS128C, vDmaC)
    k.I("s_waitcnt vmcnt(4)")
    k.I("s_barrier")

    def rd(i):
        i2 = i % 64
        j, r = divmod(i2, 16)
        ks, t = divmod(r, 2)
        fr = vFr + 4 * (i % NFR)
        base = vRd0 if t == 0 else vRd1
        off = j * 16384 + ks * 2048
        k.I(f"ds_read_b64_tr_b16 {v(fr,2)}, v{base} offset:{off}")
        k.I(f"ds_read_b64_tr_b16 {v(fr+2,2)}, v{base} offset:{off+512}")
    for i in range(AHEAD):
        rd(i)

    def pack_items(par):
        it = []
        base = vAcc[par]
        for x in range(16):
            it.append(f"v_mul_f32 v{base+2*x}, s{sScale}, v{base+2*x}")
            it.append(f"v_mul_f32 v{base+2*x+1}, s{sScale}, v{base+2*x+1}")
            it.append(f"v_max_f32 v{base+2*x}, s{sLo}, v{base+2*x}")
            it.append(f"v_max_f32 v{base+2*x+1}, s{sLo}, v{base+2*x+1}")
            it.append(f"v_cvt_pk_bf16_f32 v{vPk+x}, v{base+2*x}, v{base+2*x+1}")
        return it
    def swaps():
        lab = k.newlabel("nosw")
        k.I(f"s_cmp_eq_u32 s{sSwap}, 0")
        k.I(f"s_cbranch_scc1 {lab}")
        for t in range(2):
            for jp in range(2):
                b = vPk + 8 * t + 4 * jp
                k.I(f"v_permlane32_swap_b32 v{b}, v{b+2}")
                k.I(f"v_permlane32_swap_b32 v{b+1}, v{b+3}")
        k.L(lab)
    def stores():
        for t, ss in ((0, sSt0), (1, sSt1)):
            for jp in range(2):
                k.I(f"buffer_store_dwordx4 {v(vPk+8*t+4*jp,4)}, v{vL16}, s[{S_WS}:{S_WS+3}], s{ss} offen offset:{1024*jp}")

    def body(orient, par):
        NW = [2, 2, 6, 6]
        pk = pack_items(1 - par)
        for i in range(64):
            j, r = divmod(i, 16)
            ks, t = divmod(r, 2)
            fr = vFr + 4 * (i % NFR)
            k.I(f"s_waitcnt lgkmcnt({2*(AHEAD-1)})")
            kg = 8 * j + ks
            acc = v(vAcc[par] + 16 * t, 16)
            c = "0" if kg == 0 else acc
            if orient == "N":
                k.I(f"v_mfma_f32_32x32x16_bf16 {acc}, {v(fr,4)}, {a(4*kg,4)}, {c}")
            else:
                k.I(f"v_mfma_f32_32x32x16_bf16 {acc}, {a(4*kg,4)}, {v(fr,4)}, {c}")
            if r == BARPOS - 1:
                if "nowait" not in PFL: k.I(f"s_waitcnt vmcnt({NW[j]})")
                if "nobar" not in PFL: k.I("s_barrier")
                if "stamp" in PFL and "fine" in PFL: stamp_dyn()
                if "nodma" in PFL: pass
                elif j == 0:
                    dma(3, 3, S_BC, sSoC, sS8C, sS128C, vDmaC)
                else:
                    dma(j - 1, j - 1, S_BN, sSoN, sS8N, sS128N, vDmaN)
                if j == 1 and "nost" not in PFL:
                    stores()
            if "nord" not in PFL: rd(i + AHEAD)
            if i >= 2 and i < 17:
                for _ in range(6):
                    if pk: k.I(pk.pop(0))
            if j == 1 and r == 1:
                assert not pk
                swaps()


    def setpend():
        k.I(f"s_and_b32 s{sT}, s{sU}, 63")
        k.I(f"s_lshr_b32 s{sT2}, s{sT}, 1")
        k.I(f"s_lshl_b32 s{sT2}, s{sT2}, 6")
        k.I(f"s_add_u32 s{sT2}, s{sT2}, s{sRb32}")
        k.I(f"s_lshl_b32 s{sT2}, s{sT2}, 13")
        k.I(f"s_and_b32 s62, s{sT}, 1")
        k.I(f"s_lshl_b32 s62, s62, 12")
        k.I(f"s_add_u32 s{sT2}, s{sT2}, s62")
        k.I(f"s_mul_i32 s62, s{sRb32}, 86")
        k.I(f"s_lshl_b32 s63, s{sT}, 2")
        k.I("s_add_u32 s62, s62, s63")
        k.I("s_lshl_b32 s62, s62, 10")
        k.I(f"s_add_u32 s62, s62, {hex(H_OFF)}")
        k.I(f"s_mov_b32 s63, {hex(KW_OFF)}")
        k.I(f"s_cmp_ge_u32 s{sU}, 64")
        k.I(f"s_cselect_b32 s63, {hex(VT_OFF)}, s63")
        k.I(f"s_cselect_b32 s{sSwap}, 0, 1")
        k.I(f"s_cmp_eq_u32 s{sIsX}, 1")
        k.I(f"s_cselect_b32 s63, {hex(QW_OFF)}, s63")
        k.I(f"s_cselect_b32 s{sSwap}, 1, s{sSwap}")
        k.I(f"s_add_u32 s{sSt0}, s{sT2}, s63")
        k.I(f"s_cmp_ge_u32 s{sU}, 64")
        k.I(f"s_cselect_b32 s63, s{sIsX}, 0")
        k.I("s_cmp_eq_u32 s63, 1")
        k.I(f"s_cselect_b32 s{sSt0}, s62, s{sSt0}")
        k.I(f"s_cselect_b32 s{sLo}, 0, 0xff800000")
        k.I(f"s_add_u32 s{sSt1}, s{sSt0}, 2048")
        k.I(f"s_cmp_eq_u32 s{sU}, 85")
        k.I("s_cselect_b32 s63, s63, 0")
        k.I("s_cmp_eq_u32 s63, 1")
        k.I(f"s_cselect_b32 s{sSt1}, {hex(BIGOFF)}, s{sSt1}")
        k.I(f"s_cmp_lt_u32 s{sU}, 64")
        k.I(f"s_cselect_b32 s63, s{sIsX}, 0")
        k.I("s_cmp_eq_u32 s63, 1")
        k.I(f"s_cselect_b32 s{sScale}, {f32bits(QSCALE)}, 1.0")
        k.I(f"s_mov_b32 s{sScale+1}, s{sScale}")

    k.L("L_proj_unit")
    stamp_dyn()
    k.I(f"s_add_u32 s{sOutU}, s{sU}, 1")
    desc(sOutU, S_BN, sSoN, sS8N, sS128N, vDmaN)
    k.I(f"s_cmp_ge_u32 s{sU}, 64")
    k.I(f"s_cselect_b32 s{sT}, 1, 0")
    k.I(f"s_cmp_eq_u32 s{sIsX}, 0")
    k.I(f"s_cselect_b32 s{sT}, s{sT}, 0")
    k.I(f"s_lshl_b32 s{sT}, s{sT}, 1")
    k.I(f"s_add_u32 s{sT}, s{sT}, s{sPar}")
    k.I(f"s_cmp_eq_u32 s{sT}, 1")
    k.I("s_cbranch_scc1 L_proj_b1")
    k.I(f"s_cmp_eq_u32 s{sT}, 2")
    k.I("s_cbranch_scc1 L_proj_b2")
    k.I(f"s_cmp_eq_u32 s{sT}, 3")
    k.I("s_cbranch_scc1 L_proj_b3")
    body("N", 0)
    k.I("s_branch L_proj_unit_end")
    k.L("L_proj_b1")
    body("N", 1)
    k.I("s_branch L_proj_unit_end")
    k.L("L_proj_b2")
    body("V", 0)
    k.I("s_branch L_proj_unit_end")
    k.L("L_proj_b3")
    body("V", 1)
    k.L("L_proj_unit_end")
    setpend()
    for i in range(4):
        k.I(f"s_mov_b32 s{S_BC+i}, s{S_BN+i}")
    k.I(f"s_mov_b32 s{sSoC}, s{sSoN}")
    k.I(f"s_mov_b32 s{sS8C}, s{sS8N}")
    k.I(f"s_mov_b32 s{sS128C}, s{sS128N}")
    k.I(f"v_mov_b32 v{vDmaC}, v{vDmaN}")
    k.I(f"s_xor_b32 s{sPar}, s{sPar}, 1")
    k.I(f"s_add_u32 s{sU}, s{sU}, 1")
    k.I(f"s_cmp_lt_u32 s{sU}, s{sUend}")
    k.I("s_cbranch_scc1 L_proj_unit")
    k.I(f"s_cmp_eq_u32 s{sPar}, 0")
    k.I("s_cbranch_scc1 L_proj_fin1")
    k.nop(8)
    for x in pack_items(0): k.I(x)
    k.I("s_branch L_proj_fin")
    k.L("L_proj_fin1")
    k.nop(8)
    for x in pack_items(1): k.I(x)
    k.L("L_proj_fin")
    k.I("s_nop 1")
    swaps()
    stores()
    stamp_dyn()
    if "stamp" in PFL:
        k.I("s_memrealtime s[94:95]")
        k.I("s_waitcnt lgkmcnt(0)")
        k.I("s_sub_u32 s94, s94, s92")
        k.I("v_mov_b32 v125, s94")
        k.I("v_cmp_eq_u32 vcc, 47, v124")
        k.I("s_nop 1")
        k.I("v_cndmask_b32 v126, v126, v125, vcc")
        k.I("s_cmp_lg_u32 s2, %s" % os.environ.get("STWG", "8"))
        k.I("s_cbranch_scc1 L_proj_done")
        k.I("s_load_dwordx2 s[70:71], s[0:1], 80")
        k.I("s_waitcnt lgkmcnt(0)")
        k.I("s_mov_b32 s76, s70")
        k.I("s_mov_b32 s77, s71")
        k.I("s_mov_b32 s78, 256")
        k.I("s_mov_b32 s79, 0x00020000")
        k.I("v_lshlrev_b32 v125, 2, v0")
        k.I("buffer_store_dword v126, v125, s[76:79], 0 offen")
    k.L("L_proj_done")
    k.I("s_endpgm")
    k.meta = dict(vgpr=128, agpr=128, sgpr=100)
    return k
```

```python
from asmlib import *
from k01 import *

NEGBIG = f32bits(-1e30)
FLOOR0 = f32bits(-1e20)
THR = f32bits(8.0)

def schedule(k, mf, streams, budget=24):
    pos = [0] * len(streams)
    carry = 0
    for g, m in enumerate(mf):
        if isinstance(m, str):
            k.I(m)
        else:
            for x in m: k.I(x)
        b = budget + carry
        used = [0] * len(streams)
        progress = True
        while progress:
            progress = False
            for si, st in enumerate(streams):
                if pos[si] >= len(st["items"]): continue
                text, cost, earliest = st["items"][pos[si]]
                if earliest > g: continue
                if st.get("maxper") is not None and used[si] >= st["maxper"]: continue
                if cost > b: continue
                k.I(text); pos[si] += 1; used[si] += 1; b -= cost
                progress = True
                break
        carry = min(b, 8) if b > 0 else 0
    for si, st in enumerate(streams):
        while pos[si] < len(st["items"]):
            k.I(st["items"][pos[si]][0]); pos[si] += 1

import os
FL = set(os.environ.get("ATT_FLAGS", "").split(","))
def gen_attn():
    k = Kern("attn")
    S_K = 8; S_V = 12; S_Q = 16; S_C = 20
    sW = 24; sR = 25; sCc = 26; sH = 27
    sT = 28; sTn = 29; sNA = 30; sNB = 31; sNA2 = 32
    sG = 33
    sK1 = 34; sK2 = 35; sOff = 36; sA = 37; sB = 38; sLim = 39
    sSlot = 40; sWb = 41; sCnt = 42; sTileIdx = 43; sMo = 44; sC16 = 45
    sMk = 48
    vL = 1; vT0 = 2; vT1 = 3; vT2 = 4; vT3 = 5
    SB = [16, 48]
    vNegm = 80
    vP = 112
    vKf = 128; vVf = 160
    vKrd = 192; vVrd = 200; vKdma = 202; vVdma = 202; vL16 = 203
    vLs = 208; vMx = 210; vThr = 212; vFloor = 213
    vTmp = 214
    vDq0 = 222; vDq = 224; vNB = 226; vQoff = 227; vCoff = 228; vMst = 229; vMo = 230
    NV = 252
    aO = 0; aQ = 128
    KRING = 0; VRING = 65536; MREG = 131072

    k.L("attn_kernel")
    k.I("s_cmp_ge_u32 s2, 256")
    k.I("s_cbranch_scc1 L_attn_done")
    k.I("s_load_dwordx2 s[60:61], s[0:1], 88")
    if "stamp" in FL:
        k.I("s_load_dwordx2 s[70:71], s[0:1], 80")
        k.I("s_memtime s[64:65]")
        k.I("s_memrealtime s[66:67]")
    k.I("s_and_b32 s62, s2, 7")
    k.I("s_lshr_b32 s63, s2, 3")
    k.I(f"s_lshl_b32 s{sH}, s62, 2")
    k.I("s_lshr_b32 s62, s63, 3")
    k.I(f"s_add_u32 s{sH}, s{sH}, s62")
    k.I("s_and_b32 s63, s63, 7")
    k.I(f"s_sub_u32 s{sT}, 15, s63")
    k.I(f"s_mov_b32 s{sTn}, s63")
    k.I(f"s_lshl_b32 s{sNA}, s{sT}, 1")
    k.I(f"s_add_u32 s{sNA}, s{sNA}, 2")
    k.I(f"s_lshl_b32 s{sNB}, s{sTn}, 1")
    k.I(f"s_add_u32 s{sNB}, s{sNB}, 2")
    k.I(f"s_add_u32 s{sNA2}, s{sNA}, 2")
    k.I(f"v_and_b32 v{vL}, 63, v0")
    k.I(f"v_lshrrev_b32 v{vT0}, 6, v0")
    k.I("s_nop 0")
    k.I(f"v_readfirstlane_b32 s{sW}, v{vT0}")
    k.I("s_nop 3")
    k.I(f"s_and_b32 s{sR}, s{sW}, 1")
    k.I(f"s_lshr_b32 s{sCc}, s{sW}, 1")
    k.I(f"s_lshl_b32 s{sC16}, s{sCc}, 14")
    k.I(f"s_lshl_b32 s{sWb}, s{sCc}, 13")
    k.I(f"s_lshl_b32 s{sA}, s{sR}, 12")
    k.I(f"s_add_u32 s{sWb}, s{sWb}, s{sA}")
    k.I("s_waitcnt lgkmcnt(0)")
    k.I(f"s_lshl_b32 s{sA}, s{sH}, 19")
    for D, off in ((S_K, KW_OFF), (S_V, VT_OFF), (S_Q, QW_OFF)):
        k.I(f"s_add_u32 s{sB}, s{sA}, {hex(off)}")
        k.I(f"s_add_u32 s{D}, s60, s{sB}")
        k.I(f"s_addc_u32 s{D+1}, s61, 0")
        k.I(f"s_mov_b32 s{D+2}, {hex(512*1024)}")
        k.I(f"s_mov_b32 s{D+3}, 0x00020000")
    srd(k, S_C, 60, 61, 16 * MB, CTX_OFF)
    k.I(f"v_and_b32 v{vT0}, 31, v{vL}")
    k.I(f"v_lshrrev_b32 v{vT1}, 5, v{vL}")
    k.I(f"v_lshlrev_b32 v{vL16}, 4, v{vL}")
    k.I(f"s_lshl_b32 s{sA}, s{sCc}, 13")
    k.I(f"v_add_u32 v{vKrd}, s{sA}, v{vL16}")
    k.I(f"v_add_u32 v{vVrd}, {VRING}, v{vKrd}")
    k.I(f"s_lshl_b32 s{sA}, s{sR}, 12")
    k.I(f"v_add_u32 v{vKdma}, s{sA}, v{vL16}")
    k.I(f"s_lshl_b32 s{sA}, s{sR}, 6")
    k.I(f"s_lshl_b32 s{sB}, s{sCc}, 6")
    k.I(f"s_sub_u32 s{sA}, s{sA}, s{sB}")
    k.I(f"v_lshlrev_b32 v{vT2}, 2, v{vT1}")
    k.I(f"v_sub_u32 v{vT2}, v{vT0}, v{vT2}")
    k.I(f"v_add_u32 v{vDq0}, s{sA}, v{vT2}")
    k.I(f"v_add_u32 v{vDq0+1}, 32, v{vDq0}")
    k.I(f"v_mov_b32 v{vNB}, {NEGBIG}")
    k.I(f"s_lshl_b32 s{sA}, s{sR}, 19")
    k.I(f"s_lshl_b32 s{sB}, s{sH}, 13")
    k.I(f"s_add_u32 s{sA}, s{sA}, s{sB}")
    k.I(f"s_lshl_b32 s{sB}, s{sCc}, 12")
    k.I(f"s_add_u32 s{sA}, s{sA}, s{sB}")
    k.I(f"v_add_u32 v{vCoff}, s{sA}, v{vL16}")
    k.I(f"s_lshl_b32 s{sA}, s{sR}, 14")
    k.I(f"v_add_u32 v{vQoff}, s{sA}, v{vL16}")
    k.I(f"s_lshl_b32 s{sA}, s{sW}, 9")
    k.I(f"s_add_u32 s{sA}, s{sA}, {MREG}")
    k.I(f"v_lshlrev_b32 v{vMst}, 3, v{vT0}")
    k.I(f"v_add_u32 v{vMst}, s{sA}, v{vMst}")
    k.I(f"s_lshl_b32 s{sA}, s{sW}, 13")
    k.I(f"s_add_u32 s{sA}, s{sA}, {MREG}")
    k.I(f"v_lshlrev_b32 v{vMo}, 4, v{vL}")
    k.I(f"v_add_u32 v{vMo}, s{sA}, v{vMo}")

    nst = [0]
    def stamp(i):
        if "stamp2" not in FL: return
        k.I("s_memtime s[80:81]")
        k.I("s_waitcnt lgkmcnt(0)")
        k.I(f"s_cmp_eq_u32 s{sTileIdx}, 1")
        k.I(f"v_mov_b32 v233, s80")
        k.I(f"s_cbranch_scc1 L_st{i}b")
        k.I(f"v_mov_b32 v{234+i}, v233")
        k.I(f"s_branch L_st{i}c")
        k.L(f"L_st{i}b")
        k.I(f"v_mov_b32 v{242+i}, v233")
        k.L(f"L_st{i}c")

    def qloads(sTile):
        k.I(f"s_lshl_b32 s{sA}, s{sTile}, 15")
        for i in range(16):
            if i and i % 4 == 0:
                k.I(f"s_add_u32 s{sA}, s{sA}, 4096")
            k.I(f"buffer_load_dwordx4 {a(aQ+i*4,4)}, v{vQoff}, s[{S_Q}:{S_Q+3}], s{sA} offen offset:{(i%4)*1024}")

    def dma_items():
        it = []
        S = lambda t: it.append((t, 4))
        S(f"s_sub_u32 s{sB}, s{sG}, s{sNA2}")
        S(f"s_cmp_lt_u32 s{sG}, s{sNA}")
        S(f"s_cselect_b32 s{sA}, s{sG}, s{sB}")
        S(f"s_cselect_b32 s{sLim}, s{sNA}, s{sNB}")
        S(f"s_lshr_b32 s{sOff}, s{sA}, 1")
        S(f"s_lshl_b32 s{sOff}, s{sOff}, 15")
        S(f"s_and_b32 s{sB}, s{sA}, 1")
        S(f"s_lshl_b32 s{sB}, s{sB}, 13")
        S(f"s_add_u32 s{sOff}, s{sOff}, s{sB}")
        S(f"s_add_u32 s{sOff}, s{sOff}, s{sC16}")
        S(f"s_cmp_lt_u32 s{sA}, s{sLim}")
        S(f"s_cselect_b32 s{sOff}, s{sOff}, {hex(BIGOFF)}")
        if "dmahot" in FL: S(f"s_mov_b32 s{sOff}, 0")
        S(f"s_add_u32 m0, s{sSlot}, s{sWb}")
        S(f"s_add_u32 s{sG}, s{sG}, 1")
        for i in range(4):
            it.append((f"buffer_load_dwordx4 v{vKdma}, s[{S_K}:{S_K+3}], s{sOff} offen offset:{1024*i} lds", 8))
        S(f"s_add_u32 m0, m0, {VRING}")
        S(f"s_add_u32 s{sSlot}, s{sSlot}, 16384")
        for i in range(4):
            it.append((f"buffer_load_dwordx4 v{vVdma}, s[{S_V}:{S_V+3}], s{sK2} offen offset:{1024*i} lds", 8))
        S(f"s_and_b32 s{sSlot}, s{sSlot}, 0xffff")
        S(f"s_mov_b32 s{sK2}, s{sK1}")
        S(f"s_mov_b32 s{sK1}, s{sOff}")
        return it

    def head(vm=16):
        k.I(f"s_waitcnt vmcnt({vm}) lgkmcnt(0)")
        k.I("s_barrier")

    def kreads(odd):
        return [(f"ds_read_b128 {v(vKf+4*ks,4)}, v{vKrd} offset:{16384*odd+1024*ks}", 4) for ks in range(8)]
    def vreads(odd):
        return [(f"ds_read_b128 {v(vVf+4*(dt*2+kk),4)}, v{vVrd} offset:{16384*odd+1024*(dt*2+kk)}", 4) for kk in range(2) for dt in range(4)]
    def toggle():
        for r in [vKrd, vVrd]:
            k.I(f"v_xor_b32 v{r}, 0x8000, v{r}")

    def qk_mfmas(buf):
        out = []
        for ks in range(8):
            for qt in range(2):
                d = v(SB[buf] + 16 * qt, 16)
                c = v(vNegm + 16 * qt, 16) if ks == 0 else d
                out.append(f"v_mfma_f32_32x32x16_bf16 {d}, {v(vKf+4*ks,4)}, {a(aQ+(qt*8+ks)*4,4)}, {c}")
        return out
    def pv_mfmas(kk):
        out = []
        for dt in range(4):
            for qt in range(2):
                d = a(aO + (qt * 4 + dt) * 16, 16)
                out.append(f"v_mfma_f32_32x32x16_bf16 {d}, {v(vVf+4*(dt*2+kk),4)}, {v(vP+8*qt+4*kk,4)}, {d}")
        return out

    def exp_items(buf, kk):
        it = []
        for qt in range(2):
            b = SB[buf] + 16 * qt + 8 * kk
            for x in range(4):
                r0, r1 = b + 2 * x, b + 2 * x + 1
                it.append((f"v_exp_f32 v{r0}, v{r0}", 8))
                it.append((f"v_exp_f32 v{r1}, v{r1}", 8))
                it.append((f"v_add_f32 v{vLs+qt}, v{vLs+qt}, v{r0}", 4))
                it.append((f"v_add_f32 v{vLs+qt}, v{vLs+qt}, v{r1}", 4))
                it.append((f"v_cvt_pk_bf16_f32 v{vP+8*qt+4*kk+x}, v{r0}, v{r1}", 4))
        return it

    def mask_items(buf, moff_sgpr=None, moff_imm=0):
        it = []
        for qt in range(2):
            if moff_sgpr is not None:
                it.append((f"v_add_u32 v{vDq+qt}, s{moff_sgpr}, v{vDq0+qt}", 4))
            else:
                it.append((f"v_add_u32 v{vDq+qt}, {moff_imm}, v{vDq0+qt}", 4))
        seq = [(qt, r) for qt in range(2) for r in range(16)]
        def cmp_(i):
            qt, r = seq[i]
            return (f"v_cmp_ge_i32 s[{sMk+2*(i%4)}:{sMk+2*(i%4)+1}], v{vDq+qt}, {8*(r//4)+r%4}", 4)
        def cnd(i):
            qt, r = seq[i]
            reg = SB[buf] + 16 * qt + r
            return (f"v_cndmask_b32 v{reg}, v{vNB}, v{reg}, s[{sMk+2*(i%4)}:{sMk+2*(i%4)+1}]", 4)
        for i in range(3): it.append(cmp_(i))
        for i in range(32):
            if i + 3 < 32: it.append(cmp_(i + 3))
            else: it.append(("s_nop 0", 4))
            it.append(cnd(i))
        return it

    def max_items(buf):
        it = []
        for qt in range(2):
            b = SB[buf] + 16 * qt
            m = vMx + qt
            it.append((f"v_max3_f32 v{m}, v{b}, v{b+1}, v{b+2}", 4))
            for x in range(6):
                it.append((f"v_max3_f32 v{m}, v{m}, v{b+3+2*x}, v{b+4+2*x}", 4))
            it.append((f"v_max_f32 v{m}, v{m}, v{b+15}", 4))
        it.append((f"v_max_f32 v{vT0}, v{vMx}, v{vMx+1}", 4))
        it.append((f"v_cmp_ge_f32 vcc, v{vT0}, v{vThr}", 4))
        return it

    def slow_path(buf, lab_back):
        k.nop(12)
        for qt in range(2):
            m = vMx + qt
            k.I(f"v_mov_b32 v{vT0}, v{m}")
            k.I("s_nop 1")
            k.I(f"v_permlane32_swap_b32 v{vT0}, v{m}")
            k.I(f"v_max_f32 v{m}, v{m}, v{vT0}")
            k.I(f"v_max_f32 v{m}, v{m}, v{vFloor}")
            k.I(f"v_max_f32 v{vT1}, 0, v{m}")
            k.I(f"v_exp_f32 v{vT1}, -v{vT1}")
            for r in range(16):
                k.I(f"v_sub_f32 v{SB[buf]+16*qt+r}, v{SB[buf]+16*qt+r}, v{m}")
            for r in range(16):
                k.I(f"v_sub_f32 v{vNegm+16*qt+r}, v{vNegm+16*qt+r}, v{m}")
            k.I(f"v_mul_f32 v{vLs+qt}, v{vLs+qt}, v{vT1}")
            for r in range(64):
                ar = aO + qt * 64 + r
                t = vTmp + (r % 8)
                k.I(f"v_accvgpr_read_b32 v{t}, a{ar}")
                k.I(f"v_mul_f32 v{t}, v{t}, v{vT1}")
                k.I(f"v_accvgpr_write_b32 a{ar}, v{t}")
        k.I(f"v_mov_b32 v{vThr}, {THR}")
        k.I(f"v_mov_b32 v{vFloor}, 0")
        k.I("s_nop 1")
        k.I(f"s_branch {lab_back}")

    slow_blocks = []
    def check_branch(buf):
        ls = k.newlabel("slow"); lb = k.newlabel("back")
        k.I(f"s_cbranch_vccnz {ls}")
        k.L(lb)
        slow_blocks.append((buf, ls, lb))

    def E(items, e):
        return [(t, c, e) for (t, c) in items]

    def body(odd, mask_next=None, last=False):
        cur = odd; nxt = 1 - odd
        head()
        mf = []
        if not last:
            mf += qk_mfmas(nxt)
        nq = len(mf)
        pv0 = pv_mfmas(0); pv1 = pv_mfmas(1)
        pv0[0] = ["s_waitcnt lgkmcnt(0)", pv0[0]] if True else pv0[0]
        mf += pv0 + pv1
        e0 = exp_items(cur, 0); e1 = exp_items(cur, 1)
        if last:
            for t, c in dma_items(): k.I(t)
            for t, c in vreads(odd): k.I(t)
            qloads(sTn)
            for t, c in e0: k.I(t)
            k.I("s_nop 1")
            streams = [dict(items=E(e1, 0))]
            schedule(k, pv0, streams)
            k.I("s_nop 1")
            for m in pv1: k.I(m)
            if odd: toggle()
            return
        streams = [dict(items=E(vreads(odd), 0), maxper=2),
                   dict(items=E(e0, 0) + E(e1, 0)),
                   dict(items=E(dma_items(), 0), maxper=3)]
        n_e0 = len(e0)
        if "nodma" in FL: streams[2] = dict(items=[])
        if "noexp" in FL: e0 = []; e1 = []
        if "nord" in FL: streams[0] = dict(items=[])
        st_e = dict(items=E(e0, 0))
        schedule(k, mf[:nq], [streams[0], st_e, streams[2]])
        k.I("s_nop 1")
        st_k = dict(items=E(kreads(odd), 0), maxper=2)
        if "nord" in FL: st_k = dict(items=[])
        schedule(k, pv0, [st_k, dict(items=E(e1, 0))])
        k.I("s_nop 1")
        mi = []
        if mask_next is not None:
            mi += mask_items(nxt, moff_imm=mask_next)
        mi += max_items(nxt)
        if "nomax" in FL: mi = [("v_cmp_ge_f32 vcc, v%d, v%d" % (vNB, vFloor), 4)]
        schedule(k, pv1, [dict(items=E(mi, 0))])
        if odd: toggle()
        check_branch(nxt)

    qloads(sT)
    k.I(f"s_mov_b32 s{sG}, 0")
    k.I(f"s_mov_b32 s{sSlot}, 0")
    k.I(f"s_mov_b32 s{sK1}, {hex(BIGOFF)}")
    k.I(f"s_mov_b32 s{sK2}, {hex(BIGOFF)}")
    k.I(f"s_mov_b32 s{sTileIdx}, 0")
    for _ in range(3):
        for t, c in dma_items(): k.I(t)

    k.L("L_attn_tile")
    stamp(0)
    for r in range(128):
        k.I(f"v_accvgpr_write_b32 a{aO+r}, 0")
    for r in range(32):
        k.I(f"v_mov_b32 v{vNegm+r}, 0")
    k.I(f"v_mov_b32 v{vLs}, 0")
    k.I(f"v_mov_b32 v{vLs+1}, 0")
    k.I(f"v_mov_b32 v{vThr}, {NEGBIG}")
    k.I(f"v_mov_b32 v{vFloor}, {FLOOR0}")
    head()
    for t, c in dma_items(): k.I(t)
    for t, c in kreads(0): k.I(t)
    stamp(1)
    head(vm=8)
    for t, c in dma_items(): k.I(t)
    for m in qk_mfmas(0): k.I(m)
    for t, c in kreads(1): k.I(t)
    k.I(f"s_lshl_b32 s{sMo}, s{sT}, 7")
    k.nop(6)
    for t, c in mask_items(0, moff_sgpr=sMo): k.I(t)
    for t, c in max_items(0): k.I(t)
    toggle()
    check_branch(0)
    stamp(2)
    k.I(f"s_cmp_eq_u32 s{sT}, 0")
    k.I("s_cbranch_scc1 L_attn_tail")
    k.I(f"s_sub_u32 s{sCnt}, s{sT}, 1")
    k.L("L_attn_loop")
    k.I(f"s_cmp_eq_u32 s{sCnt}, 0")
    k.I("s_cbranch_scc1 L_attn_pretail")
    body(0); body(1)
    k.I(f"s_sub_u32 s{sCnt}, s{sCnt}, 1")
    k.I("s_branch L_attn_loop")
    k.L("L_attn_pretail")
    stamp(3)
    body(0); body(1, mask_next=0)
    k.L("L_attn_tail")
    stamp(4)
    body(0, mask_next=-32); body(1, last=True)

    stamp(5)
    k.nop(12)
    for qt in range(2):
        k.I(f"v_mov_b32 v{vT0}, v{vLs+qt}")
        k.I("s_nop 1")
        k.I(f"v_permlane32_swap_b32 v{vT0}, v{vLs+qt}")
        k.I(f"v_add_f32 v{vTmp+2*qt+1}, v{vLs+qt}, v{vT0}")
        k.I(f"v_sub_f32 v{vTmp+2*qt}, 0, v{vNegm+16*qt}")
    for qt in range(2):
        k.I(f"ds_write_b64 v{vMst}, {v(vTmp+2*qt,2)} offset:{256*qt}")
    k.I(f"v_xor_b32 v{vT3}, 1024, v{vMst}")
    k.I("s_waitcnt lgkmcnt(0)")
    k.I("s_barrier")
    for qt in range(2):
        k.I(f"ds_read_b64 {v(vTmp+4+2*qt,2)}, v{vT3} offset:{256*qt}")
    k.I("s_waitcnt lgkmcnt(0)")
    k.I("s_barrier")
    for qt in range(2):
        mo, lo, mp, lp = vTmp + 2 * qt, vTmp + 2 * qt + 1, vTmp + 4 + 2 * qt, vTmp + 5 + 2 * qt
        k.I(f"v_max_f32 v{vT0}, v{mo}, v{mp}")
        k.I(f"v_sub_f32 v{mo}, v{mo}, v{vT0}")
        k.I(f"v_sub_f32 v{mp}, v{mp}, v{vT0}")
        k.I(f"v_exp_f32 v{mo}, v{mo}")
        k.I(f"v_exp_f32 v{mp}, v{mp}")
        k.I("s_nop 0")
        k.I(f"v_mul_f32 v{lo}, v{lo}, v{mo}")
        k.I(f"v_fma_f32 v{lo}, v{lp}, v{mp}, v{lo}")
        k.I(f"v_rcp_f32 v{lo}, v{lo}")
        k.I("s_nop 0")
        k.I(f"v_mul_f32 v{vMx+qt}, v{mo}, v{lo}")
        k.I(f"v_mul_f32 v{vDq+qt}, v{mp}, v{lo}")
    k.I(f"v_xor_b32 v{vT3}, 16384, v{vMo}")
    k.I(f"s_lshl_b32 s{sA}, s{sT}, 20")
    k.I(f"s_cmp_eq_u32 s{sCc}, 1")
    k.I("s_cbranch_scc1 L_attn_merge1")
    for c in range(2):
        if c == 1:
            k.L("L_attn_merge1")
        keep = (0, 1) if c == 0 else (2, 3)
        send = (2, 3) if c == 0 else (0, 1)
        for qt in range(2):
            for ti, dt in enumerate(send):
                for q4 in range(4):
                    k.I(f"ds_write_b128 v{vMo}, {a(aO+(qt*4+dt)*16+4*q4,4)} offset:{(ti*4+q4)*1024}")
            k.I("s_waitcnt lgkmcnt(0)")
            k.I("s_barrier")
            R = SB[0]
            for i in range(8):
                k.I(f"ds_read_b128 {v(R+4*i,4)}, v{vT3} offset:{i*1024}")
            k.I("s_waitcnt lgkmcnt(0)")
            k.I("s_barrier")
            PK = SB[1]
            for ti, dt in enumerate(keep):
                for r in range(16):
                    t = vTmp + (r % 2)
                    k.I(f"v_accvgpr_read_b32 v{t}, a{aO+(qt*4+dt)*16+r}")
                    k.I(f"v_mul_f32 v{t}, v{t}, v{vMx+qt}")
                    k.I(f"v_fma_f32 v{t}, v{R+16*ti+r}, v{vDq+qt}, v{t}")
                    if r % 2 == 1:
                        k.I(f"v_cvt_pk_bf16_f32 v{PK+8*ti+r//2}, v{vTmp}, v{vTmp+1}")
            k.I("s_nop 1")
            for ti, dt in enumerate(keep):
                for jp in range(2):
                    b = PK + 8 * ti + 4 * jp
                    k.I(f"v_permlane32_swap_b32 v{b}, v{b+2}")
                    k.I(f"v_permlane32_swap_b32 v{b+1}, v{b+3}")
            if qt == 1:
                k.I(f"s_add_u32 s{sA}, s{sA}, {256*1024}")
            for ti, dt in enumerate(keep):
                for jp in range(2):
                    b = PK + 8 * ti + 4 * jp
                    k.I(f"buffer_store_dwordx4 {v(b,4)}, v{vCoff}, s[{S_C}:{S_C+3}], s{sA} offen offset:{2048*ti+1024*jp}")
            k.I("s_nop 1")
        if c == 0:
            k.I("s_branch L_attn_merged")
    k.L("L_attn_merged")
    stamp(6)
    k.I(f"s_cmp_eq_u32 s{sTileIdx}, 1")
    k.I("s_cbranch_scc1 L_attn_done")
    k.I(f"s_mov_b32 s{sTileIdx}, 1")
    k.I(f"s_mov_b32 s{sT}, s{sTn}")
    k.I("s_branch L_attn_tile")
    k.L("L_attn_done")
    if "stamp2" in FL:
        k.I("s_cmp_lg_u32 s2, 0")
        k.I("s_cbranch_scc1 L_attn_done3")
        k.I("s_load_dwordx2 s[70:71], s[0:1], 80")
        k.I("s_waitcnt lgkmcnt(0)")
        k.I("s_mov_b32 s76, s70")
        k.I("s_mov_b32 s77, s71")
        k.I("s_mov_b32 s78, 256")
        k.I("s_mov_b32 s79, 0x00020000")
        k.I("v_lshrrev_b32 v4, 6, v0")
        k.I("v_lshlrev_b32 v4, 6, v4")
        for i in range(4):
            k.I(f"buffer_store_dwordx4 v[{234+4*i}:{237+4*i}], v4, s[76:79], 0 offen offset:{16*i}")
        k.L("L_attn_done3")
    if "stamp" in FL:
        k.I("s_cmp_lg_u32 s2, 0")
        k.I("s_cbranch_scc1 L_attn_done2")
        k.I("s_memtime s[72:73]")
        k.I("s_memrealtime s[74:75]")
        k.I("s_waitcnt lgkmcnt(0)")
        k.I("s_sub_u32 s72, s72, s64")
        k.I("s_sub_u32 s74, s74, s66")
        k.I("s_mov_b32 s76, s70")
        k.I("s_mov_b32 s77, s71")
        k.I("s_mov_b32 s78, 256")
        k.I("s_mov_b32 s79, 0x00020000")
        k.I("v_mov_b32 v2, s72")
        k.I("v_mov_b32 v3, s74")
        k.I("v_lshrrev_b32 v4, 6, v0")
        k.I("v_lshlrev_b32 v4, 3, v4")
        k.I("buffer_store_dwordx2 v[2:3], v4, s[76:79], 0 offen")
        k.L("L_attn_done2")
    k.I("s_endpgm")
    for buf, ls, lb in slow_blocks:
        k.L(ls)
        slow_path(buf, lb)
    k.meta = dict(vgpr=NV, agpr=192, sgpr=84)
    return k
```

```python
from asmlib import *
from k01 import *
from k2 import schedule, NEGBIG, FLOOR0, THR
import os
FL = set(os.environ.get("ATT_FLAGS", "").split(","))
BUD = int(os.environ.get("ATT_BUD", "24"))
BUD2 = int(os.environ.get("ATT_BUD2", "32"))

def gen_attn():
    k = Kern("attn")
    S_K = 8; S_V = 12; S_Q = 16; S_C = 20
    sW = 24; sG_ = 25; sCc = 26; sH = 27
    sT = 28; sTn = 29
    sOffK = 30; sCntK = 31; sOffV = 32; sCntV = 33
    sSB = 34
    sA = 37; sB = 38
    sCnt = 42; sTileIdx = 43; sMo = 44
    sMk = 48
    vL = 1; vT0 = 2; vT1 = 3; vT2 = 4; vT3 = 5
    vKrd = 6; vVrd = 7; vDma = 8; vL16 = 9
    vLs = 10; vMx = 21; vThr = 12; vFloor = 13
    vDq0 = 14; vDq = 15; vNB = 16; vQoff = 17; vCoff = 18; vMst = 19; vMo = 20
    vTmp = 22
    SB = [32, 48]
    vNegm = 64
    vP = 80
    vKf = 88; vVf = 120
    NV = 152
    vStamp = 152
    if "stamp2" in FL: NV = 160
    aO = 0; aQ = 64
    KRING = 0; VRING = 65536; MREG = 131072

    k.L("attn_kernel")
    k.I("s_cmp_ge_u32 s2, 256")
    k.I("s_cbranch_scc1 L_attn_done")
    k.I("s_load_dwordx2 s[60:61], s[0:1], 88")
    k.I("s_and_b32 s62, s2, 7")
    k.I("s_lshr_b32 s63, s2, 3")
    k.I(f"s_lshl_b32 s{sH}, s62, 2")
    k.I("s_lshr_b32 s62, s63, 3")
    k.I(f"s_add_u32 s{sH}, s{sH}, s62")
    k.I("s_and_b32 s63, s63, 7")
    k.I(f"s_sub_u32 s{sT}, 15, s63")
    k.I(f"s_mov_b32 s{sTn}, s63")
    k.I(f"v_and_b32 v{vL}, 63, v0")
    k.I(f"v_lshrrev_b32 v{vT0}, 6, v0")
    k.I(f"v_lshlrev_b32 v{vL16}, 4, v{vL}")
    k.I(f"v_readfirstlane_b32 s{sW}, v{vT0}")
    k.I("s_nop 3")
    k.I(f"s_and_b32 s{sG_}, s{sW}, 3")
    k.I(f"s_lshr_b32 s{sCc}, s{sW}, 2")
    k.I(f"s_lshl_b32 s{sCntK}, s{sT}, 1")
    k.I(f"s_add_u32 s{sCntK}, s{sCntK}, 4")
    k.I(f"s_add_u32 s{sCntV}, s{sCntK}, 2")
    k.I(f"s_mov_b32 s{sOffK}, {hex((1<<32)-16384)}")
    k.I(f"s_mov_b32 s{sOffV}, {hex((1<<32)-3*16384)}")
    k.I(f"s_lshl_b32 s{sSB}, s{sW}, 11")
    k.I("s_waitcnt lgkmcnt(0)")
    k.I(f"s_lshl_b32 s{sA}, s{sH}, 19")
    for D, off in ((S_K, KW_OFF), (S_V, VT_OFF), (S_Q, QW_OFF)):
        k.I(f"s_add_u32 s{sB}, s{sA}, {hex(off)}")
        k.I(f"s_add_u32 s{D}, s60, s{sB}")
        k.I(f"s_addc_u32 s{D+1}, s61, 0")
        k.I(f"s_mov_b32 s{D+2}, {hex(512*1024)}")
        k.I(f"s_mov_b32 s{D+3}, 0x00020000")
    srd(k, S_C, 60, 61, 16 * MB, CTX_OFF)
    k.I(f"v_and_b32 v{vT0}, 31, v{vL}")
    k.I(f"v_lshrrev_b32 v{vT1}, 5, v{vL}")
    k.I(f"s_lshl_b32 s{sA}, s{sCc}, 13")
    k.I(f"v_add_u32 v{vKrd}, s{sA}, v{vL16}")
    k.I(f"v_add_u32 v{vVrd}, {VRING}, v{vKrd}")
    k.I(f"v_add_u32 v{vDma}, s{sSB}, v{vL16}")
    k.I(f"s_sub_u32 s{sA}, s{sG_}, s{sCc}")
    k.I(f"s_lshl_b32 s{sA}, s{sA}, 5")
    k.I(f"v_lshlrev_b32 v{vT2}, 2, v{vT1}")
    k.I(f"v_sub_u32 v{vT2}, v{vT0}, v{vT2}")
    k.I(f"v_add_u32 v{vDq0}, s{sA}, v{vT2}")
    k.I(f"v_mov_b32 v{vNB}, {NEGBIG}")
    k.I(f"s_lshl_b32 s{sA}, s{sG_}, 18")
    k.I(f"s_lshl_b32 s{sB}, s{sH}, 13")
    k.I(f"s_add_u32 s{sA}, s{sA}, s{sB}")
    k.I(f"s_lshl_b32 s{sB}, s{sCc}, 12")
    k.I(f"s_add_u32 s{sA}, s{sA}, s{sB}")
    k.I(f"v_add_u32 v{vCoff}, s{sA}, v{vL16}")
    k.I(f"s_lshl_b32 s{sA}, s{sG_}, 13")
    k.I(f"v_add_u32 v{vQoff}, s{sA}, v{vL16}")
    k.I(f"s_lshl_b32 s{sA}, s{sW}, 8")
    k.I(f"s_add_u32 s{sA}, s{sA}, 16384")
    k.I(f"v_lshlrev_b32 v{vMst}, 3, v{vT0}")
    k.I(f"v_add_u32 v{vMst}, s{sA}, v{vMst}")
    k.I(f"s_lshl_b32 s{sA}, s{sW}, 12")
    k.I(f"s_add_u32 s{sA}, s{sA}, {MREG}")
    k.I(f"v_add_u32 v{vMo}, s{sA}, v{vL16}")

    def stamp(i):
        if "stamp2" not in FL: return
        k.I("s_memtime s[80:81]")
        k.I("s_waitcnt lgkmcnt(0)")
        k.I(f"s_lshl_b32 s82, s{sTileIdx}, 3")
        k.I(f"s_add_u32 s82, s82, {i}")
        k.I(f"v_mov_b32 v{vStamp+1}, s80")
        k.I(f"v_cmp_eq_u32 vcc, s82, v{vL}")
        k.I("s_nop 1")
        k.I(f"v_cndmask_b32 v{vStamp}, v{vStamp}, v{vStamp+1}, vcc")

    def qloads(sTile):
        k.I(f"s_lshl_b32 s{sA}, s{sTile}, 15")
        for i in range(8):
            if i == 4:
                k.I(f"s_add_u32 s{sA}, s{sA}, 4096")
            k.I(f"buffer_load_dwordx4 {a(aQ+i*4,4)}, v{vQoff}, s[{S_Q}:{S_Q+3}], s{sA} offen offset:{(i%4)*1024}")

    def dma_items(slot_odd):
        it = []
        S = lambda t: it.append((t, 4))
        S(f"s_add_u32 s{sOffK}, s{sOffK}, 16384")
        S(f"s_sub_u32 s{sCntK}, s{sCntK}, 1")
        S(f"s_cselect_b32 s{sOffK}, 0, s{sOffK}")
        S(f"s_add_u32 m0, s{sSB}, {slot_odd*16384}")
        S(f"s_add_u32 s{sOffV}, s{sOffV}, 16384")
        for i in range(2):
            it.append((f"buffer_load_dwordx4 v{vDma}, s[{S_K}:{S_K+3}], s{sOffK} offen offset:{1024*i} lds", 8))
        S(f"s_sub_u32 s{sCntV}, s{sCntV}, 1")
        S(f"s_cselect_b32 s{sOffV}, 0, s{sOffV}")
        S(f"s_add_u32 m0, s{sSB}, {slot_odd*16384+VRING}")
        if slot_odd:
            S(f"s_xor_b32 s{sSB}, s{sSB}, 0x8000")
        else:
            S("s_nop 0")
        for i in range(2):
            it.append((f"buffer_load_dwordx4 v{vDma}, s[{S_V}:{S_V+3}], s{sOffV} offen offset:{1024*i} lds", 8))
        return it

    def head(vm=8):
        k.I(f"s_waitcnt vmcnt({vm}) lgkmcnt(0)")
        k.I("s_barrier")

    def kreads(odd):
        return [(f"ds_read_b128 {v(vKf+4*ks,4)}, v{vKrd} offset:{16384*odd+1024*ks}", 4) for ks in range(8)]
    def vreads(odd):
        return [(f"ds_read_b128 {v(vVf+4*(dt*2+kk),4)}, v{vVrd} offset:{16384*odd+1024*(dt*2+kk)}", 4) for kk in range(2) for dt in range(4)]
    def toggle():
        for r in [vKrd, vVrd]:
            k.I(f"v_xor_b32 v{r}, 0x8000, v{r}")

    def qk_mfmas(buf):
        out = []
        for ks in range(8):
            d = v(SB[buf], 16)
            c = v(vNegm, 16) if ks == 0 else d
            out.append(f"v_mfma_f32_32x32x16_bf16 {d}, {v(vKf+4*ks,4)}, {a(aQ+ks*4,4)}, {c}")
        return out
    def pv_mfmas(kk):
        out = []
        for dt in range(4):
            d = a(aO + dt * 16, 16)
            out.append(f"v_mfma_f32_32x32x16_bf16 {d}, {v(vVf+4*(dt*2+kk),4)}, {v(vP+4*kk,4)}, {d}")
        return out

    def exp_items(buf, kk):
        it = []
        b = SB[buf] + 8 * kk
        for x in range(4):
            r0, r1 = b + 2 * x, b + 2 * x + 1
            if "e_indep" in FL:
                it.append((f"v_exp_f32 v{vTmp+x}, v{vTmp+4+x}", 8))
                it.append((f"v_exp_f32 v{vTmp+x}, v{vTmp+4+x}", 8))
                continue
            if "e_noexp" in FL: continue
            it.append((f"v_exp_f32 v{r0}, v{r0}", 8))
            it.append((f"v_exp_f32 v{r1}, v{r1}", 8))
        for x in range(4):
            r0, r1 = b + 2 * x, b + 2 * x + 1
            if "e_nocvt" not in FL: it.append((f"v_cvt_pk_bf16_f32 v{vP+4*kk+x}, v{r0}, v{r1}", 4))
            if "e_noadd" in FL: pass
            elif "e_pk" in FL: it.append((f"v_pk_add_f32 {v(vLs,2)}, {v(vLs,2)}, {v(r0,2)}", 4))
            elif "e_dot" in FL: it.append((f"v_dot2_f32_bf16 v{vLs+(x&1)}, v{vP+4*kk+x}, v{vFloor}, v{vLs+(x&1)}", 4))
            else:
                it.append((f"v_add_f32 v{vLs}, v{vLs}, v{r0}", 4))
                it.append((f"v_add_f32 v{vLs+1}, v{vLs+1}, v{r1}", 4))
        return it

    def mask_items(buf, moff_sgpr=None, moff_imm=0):
        it = []
        if moff_sgpr is not None:
            it.append((f"v_add_u32 v{vDq}, s{moff_sgpr}, v{vDq0}", 4))
        else:
            it.append((f"v_add_u32 v{vDq}, {moff_imm}, v{vDq0}", 4))
        def cmp_(r):
            return (f"v_cmp_ge_i32 s[{sMk+2*(r%4)}:{sMk+2*(r%4)+1}], v{vDq}, {8*(r//4)+r%4}", 4)
        def cnd(r):
            reg = SB[buf] + r
            return (f"v_cndmask_b32 v{reg}, v{vNB}, v{reg}, s[{sMk+2*(r%4)}:{sMk+2*(r%4)+1}]", 4)
        for i in range(3): it.append(cmp_(i))
        for i in range(16):
            if i + 3 < 16: it.append(cmp_(i + 3))
            else: it.append(("s_nop 0", 4))
            it.append(cnd(i))
        return it

    def max_items(buf):
        it = []
        b = SB[buf]
        m = vMx
        it.append((f"v_max3_f32 v{m}, v{b}, v{b+1}, v{b+2}", 4))
        for x in range(6):
            it.append((f"v_max3_f32 v{m}, v{m}, v{b+3+2*x}, v{b+4+2*x}", 4))
        it.append((f"v_max_f32 v{m}, v{m}, v{b+15}", 4))
        it.append((f"v_cmp_ge_f32 vcc, v{m}, v{vThr}", 4))
        return it

    def slow_path(buf, lab_back):
        k.nop(12)
        m = vMx
        k.I(f"v_mov_b32 v{vT0}, v{m}")
        k.I("s_nop 1")
        k.I(f"v_permlane32_swap_b32 v{vT0}, v{m}")
        k.I(f"v_max_f32 v{m}, v{m}, v{vT0}")
        k.I(f"v_max_f32 v{m}, 0, v{m}")
        k.I(f"v_exp_f32 v{vT1}, -v{m}")
        for r in range(16):
            k.I(f"v_sub_f32 v{SB[buf]+r}, v{SB[buf]+r}, v{m}")
        for r in range(16):
            k.I(f"v_sub_f32 v{vNegm+r}, v{vNegm+r}, v{m}")
        k.I(f"v_mul_f32 v{vLs}, v{vLs}, v{vT1}")
        k.I(f"v_mul_f32 v{vLs+1}, v{vLs+1}, v{vT1}")
        for r in range(64):
            ar = aO + r
            t = vTmp + (r % 8)
            k.I(f"v_accvgpr_read_b32 v{t}, a{ar}")
            k.I(f"v_mul_f32 v{t}, v{t}, v{vT1}")
            k.I(f"v_accvgpr_write_b32 a{ar}, v{t}")
        k.I("s_nop 1")
        k.I(f"s_branch {lab_back}")

    slow_blocks = []
    def check_branch(buf):
        ls = k.newlabel("slow"); lb = k.newlabel("back")
        k.I(f"s_cbranch_vccnz {ls}")
        k.L(lb)
        slow_blocks.append((buf, ls, lb))

    def E(items, e):
        return [(t, c, e) for (t, c) in items]

    def body(odd, mask_next=None, last=False):
        cur = odd; nxt = 1 - odd
        head()
        pv0 = pv_mfmas(0); pv1 = pv_mfmas(1)
        pv0[0] = ["s_waitcnt lgkmcnt(0)", pv0[0]]
        e0 = exp_items(cur, 0); e1 = exp_items(cur, 1)
        dm = dma_items(1 - odd)
        if last:
            for t, c in vreads(odd): k.I(t)
            for t, c in dm: k.I(t)
            qloads(sTn)
            for t, c in e0: k.I(t)
            k.I("s_nop 1")
            schedule(k, pv0, [dict(items=E(e1, 0))], BUD)
            k.I("s_nop 1")
            for m in pv1: k.I(m)
            if odd: toggle()
            return
        rds = E(vreads(odd), 0) + [(x, c, i) for i, (x, c) in enumerate(kreads(odd))]
        st_r = dict(items=rds, maxper=2)
        st_d = dict(items=E(dm, 0), maxper=5)
        if "nodma" in FL: st_d = dict(items=[])
        if "noexp" in FL: e0 = []; e1 = []
        if "nord" in FL: st_r = dict(items=[])
        pv0[0] = ["s_waitcnt lgkmcnt(12)", pv0[0][1]]
        pv1[0] = ["s_waitcnt lgkmcnt(8)", pv1[0]]
        schedule(k, qk_mfmas(nxt), [st_r, dict(items=E(e0, 0))], BUD)
        k.I("s_nop 1")
        schedule(k, pv0, [dict(items=E(e1, 0))], BUD)
        k.I("s_nop 1")
        mi = []
        if mask_next is not None:
            mi += mask_items(nxt, moff_imm=mask_next)
        mi += max_items(nxt)
        schedule(k, pv1, [dict(items=E(mi, 0)), st_d], BUD2)
        if odd: toggle()
        check_branch(nxt)

    if "stamp2" in FL: k.I(f"v_mov_b32 v{vStamp}, 0")
    k.I(f"s_mov_b32 s{sTileIdx}, 0")
    qloads(sT)
    for st in range(3):
        for t, c in dma_items(st & 1): k.I(t)
    k.I(f"v_mov_b32 v{vThr}, {THR}")
    k.I(f"v_mov_b32 v{vFloor}, 0x3f803f80")

    k.L("L_attn_tile")
    stamp(0)
    for r in range(64):
        k.I(f"v_accvgpr_write_b32 a{aO+r}, 0")
    for r in range(16):
        k.I(f"v_mov_b32 v{vNegm+r}, 0")
    k.I(f"v_mov_b32 v{vLs}, 0")
    k.I(f"v_mov_b32 v{vLs+1}, 0")
    head()
    for t, c in kreads(0): k.I(t)
    for t, c in dma_items(1): k.I(t)
    stamp(1)
    head(vm=8)
    for m in qk_mfmas(0): k.I(m)
    for t, c in kreads(1): k.I(t)
    for t, c in dma_items(0): k.I(t)
    k.I(f"s_lshl_b32 s{sMo}, s{sT}, 7")
    for t, c in mask_items(0, moff_sgpr=sMo): k.I(t)
    for t, c in max_items(0)[:-1]: k.I(t)
    toggle()
    k.I(f"v_mov_b32 v{vT0}, v{vMx}")
    k.I("s_nop 1")
    k.I(f"v_permlane32_swap_b32 v{vT0}, v{vMx}")
    k.I(f"v_max3_f32 v{vMx}, v{vMx}, v{vT0}, {FLOOR0}" if False else f"v_max_f32 v{vMx}, v{vMx}, v{vT0}")
    k.I(f"v_max_f32 v{vMx}, {FLOOR0}, v{vMx}")
    for r in range(16):
        k.I(f"v_sub_f32 v{SB[0]+r}, v{SB[0]+r}, v{vMx}")
    for r in range(16):
        k.I(f"v_sub_f32 v{vNegm+r}, 0, v{vMx}")
    stamp(2)
    k.I(f"s_cmp_eq_u32 s{sT}, 0")
    k.I("s_cbranch_scc1 L_attn_tail")
    k.I(f"s_sub_u32 s{sCnt}, s{sT}, 1")
    k.L("L_attn_loop")
    k.I(f"s_cmp_eq_u32 s{sCnt}, 0")
    k.I("s_cbranch_scc1 L_attn_pretail")
    body(0); body(1)
    k.I(f"s_sub_u32 s{sCnt}, s{sCnt}, 1")
    k.I("s_branch L_attn_loop")
    k.L("L_attn_pretail")
    stamp(3)
    body(0); body(1, mask_next=0)
    k.L("L_attn_tail")
    stamp(4)
    body(0, mask_next=-64); body(1, last=True)

    stamp(5)
    k.I(f"v_add_f32 v{vLs}, v{vLs}, v{vLs+1}")
    k.I(f"v_sub_f32 v{vTmp}, 0, v{vNegm}")
    k.I(f"v_mov_b32 v{vT0}, v{vLs}")
    k.I("s_nop 1")
    k.I(f"v_permlane32_swap_b32 v{vT0}, v{vLs}")
    k.I(f"v_add_f32 v{vTmp+1}, v{vLs}, v{vT0}")
    k.I(f"v_and_b32 v{vT3}, 0x8000, v{vKrd}")
    k.I(f"v_xor_b32 v{vT3}, 0x8000, v{vT3}")
    k.I(f"v_add_u32 v{vT3}, v{vT3}, v{vMst}")
    k.I(f"ds_write_b64 v{vT3}, {v(vTmp,2)}")
    k.I(f"v_xor_b32 v{vT3}, 1024, v{vT3}")
    k.I(f"v_xor_b32 v{vT2}, 16384, v{vMo}")
    k.I(f"s_lshl_b32 s{sA}, s{sT}, 20")
    k.I(f"s_cmp_eq_u32 s{sCc}, 1")
    k.I("s_cbranch_scc1 L_attn_merge1")
    for c in range(2):
        if c == 1:
            k.L("L_attn_merge1")
        keep = (0, 1) if c == 0 else (2, 3)
        send = (2, 3) if c == 0 else (0, 1)
        R = SB[0]
        PK = vKf
        k.nop(4)
        for ti in range(2):
            dt = send[ti]
            for q4 in range(4):
                k.I(f"ds_write_b128 v{vMo}, {a(aO+dt*16+4*q4,4)} offset:{q4*1024}")
            k.I("s_waitcnt lgkmcnt(0)")
            k.I("s_barrier")
            if ti == 0:
                k.I(f"ds_read_b64 {v(vTmp+2,2)}, v{vT3}")
            for i in range(4):
                k.I(f"ds_read_b128 {v(R+16*ti+4*i,4)}, v{vT2} offset:{i*1024}")
            if ti == 0:
                k.I("s_waitcnt lgkmcnt(4)")
                mo, lo, mp, lp = vTmp, vTmp + 1, vTmp + 2, vTmp + 3
                k.I(f"v_max_f32 v{vT0}, v{mo}, v{mp}")
                k.I(f"v_sub_f32 v{mo}, v{mo}, v{vT0}")
                k.I(f"v_sub_f32 v{mp}, v{mp}, v{vT0}")
                k.I(f"v_exp_f32 v{mo}, v{mo}")
                k.I(f"v_exp_f32 v{mp}, v{mp}")
                k.I("s_nop 0")
                k.I(f"v_mul_f32 v{lo}, v{lo}, v{mo}")
                k.I(f"v_fma_f32 v{lo}, v{lp}, v{mp}, v{lo}")
                k.I(f"v_rcp_f32 v{lo}, v{lo}")
                k.I("s_nop 0")
                k.I(f"v_mul_f32 v{vMx}, v{mo}, v{lo}")
                k.I(f"v_mul_f32 v{vDq}, v{mp}, v{lo}")
            k.I("s_waitcnt lgkmcnt(0)")
            k.I("s_barrier")
        for ti, dt in enumerate(keep):
            for r in range(16):
                t = vTmp + 4 + (r % 2)
                k.I(f"v_accvgpr_read_b32 v{t}, a{aO+dt*16+r}")
                k.I(f"v_mul_f32 v{t}, v{t}, v{vMx}")
                k.I(f"v_fma_f32 v{t}, v{R+16*ti+r}, v{vDq}, v{t}")
                if r % 2 == 1:
                    k.I(f"v_cvt_pk_bf16_f32 v{PK+8*ti+r//2}, v{vTmp+4}, v{vTmp+5}")
        k.I("s_nop 1")
        for ti, dt in enumerate(keep):
            for jp in range(2):
                b = PK + 8 * ti + 4 * jp
                k.I(f"v_permlane32_swap_b32 v{b}, v{b+2}")
                k.I(f"v_permlane32_swap_b32 v{b+1}, v{b+3}")
        for ti, dt in enumerate(keep):
            for jp in range(2):
                b = PK + 8 * ti + 4 * jp
                k.I(f"buffer_store_dwordx4 {v(b,4)}, v{vCoff}, s[{S_C}:{S_C+3}], s{sA} offen offset:{2048*ti+1024*jp}")
        k.I("s_nop 1")
        if c == 0:
            k.I("s_branch L_attn_merged")
    k.L("L_attn_merged")
    stamp(6)
    k.I(f"s_cmp_eq_u32 s{sTileIdx}, 1")
    k.I("s_cbranch_scc1 L_attn_fin")
    k.I(f"s_mov_b32 s{sTileIdx}, 1")
    k.I(f"s_mov_b32 s{sT}, s{sTn}")
    k.I("s_branch L_attn_tile")
    k.L("L_attn_fin")
    if "stamp2" in FL:
        k.I("s_cmp_lg_u32 s2, 0")
        k.I("s_cbranch_scc1 L_attn_done")
        k.I("s_load_dwordx2 s[70:71], s[0:1], 80")
        k.I("s_waitcnt lgkmcnt(0)")
        k.I("s_mov_b32 s76, s70")
        k.I("s_mov_b32 s77, s71")
        k.I("s_mov_b32 s78, 64")
        k.I("s_mov_b32 s79, 0x00020000")
        k.I("v_lshlrev_b32 v4, 2, v0")
        k.I(f"buffer_store_dword v{vStamp}, v4, s[76:79], 0 offen")
    k.L("L_attn_done")
    k.I("s_endpgm")
    for buf, ls, lb in slow_blocks:
        k.L(ls)
        slow_path(buf, lb)
    k.meta = dict(vgpr=NV, agpr=96, sgpr=84)
    return k
```

```python
from asmlib import *
from k01 import *

def gen_outgemm():
    k = Kern("outg")
    S_A = 8; S_B = 12; S_P = 16
    sW = 24; sRb = 25; sCg = 26; sSp = 27; sK0 = 28; sKl = 29; sT = 30; sT2 = 31; sWb = 32; sSo = 33; sStr = 34; sAo = 35; sT3 = 36
    vL = 1; vT = 2; vT2 = 3; vT3 = 4
    vRd = 5
    vDma = 9; vAo = 10; vSt = 11
    vAcc = 16
    vA = 80
    vFr = 144; NFR = 6
    NV = vFr + 4 * NFR
    NST = 11
    k.L("outg_kernel")
    k.I("s_cmp_ge_u32 s2, 256")
    k.I("s_cbranch_scc1 L_outg_done")
    k.I("s_load_dwordx2 s[52:53], s[0:1], 40")
    k.I("s_load_dwordx2 s[54:55], s[0:1], 64")
    k.I("s_load_dwordx2 s[60:61], s[0:1], 88")
    k.I(f"s_and_b32 s{sSp}, s2, 7")
    k.I("s_lshr_b32 s63, s2, 3")
    k.I(f"s_and_b32 s{sRb}, s63, 7")
    k.I(f"s_lshr_b32 s{sCg}, s63, 3")
    k.I(f"s_mul_i32 s{sK0}, s{sSp}, 22")
    k.I(f"s_mul_i32 s{sT}, s{sSp}, 21")
    k.I(f"s_add_u32 s{sT}, s{sT}, 2")
    k.I(f"s_cmp_lt_u32 s{sSp}, 2")
    k.I(f"s_cselect_b32 s{sK0}, s{sK0}, s{sT}")
    k.I(f"s_cselect_b32 s{sKl}, 22, 21")
    k.I(f"s_sub_u32 s{sT}, s{sSp}, 6")
    k.I(f"s_mul_i32 s{sT}, s{sT}, 22")
    k.I(f"s_cmp_ge_u32 s{sSp}, 6")
    k.I(f"s_cselect_b32 s{sK0}, s{sT}, s{sK0}")
    k.I(f"s_cmp_eq_u32 s{sSp}, 6")
    k.I(f"s_cselect_b32 s{sKl}, 22, s{sKl}")
    k.I(f"s_lshl_b32 s{sK0}, s{sK0}, 5")
    k.I(f"s_lshl_b32 s{sKl}, s{sKl}, 5")
    k.I(f"v_and_b32 v{vL}, 63, v0")
    k.I(f"v_lshrrev_b32 v{vT}, 6, v0")
    k.I("s_nop 0")
    k.I(f"v_readfirstlane_b32 s{sW}, v{vT}")
    k.I("s_waitcnt lgkmcnt(0)")
    k.I(f"s_add_u32 s40, s60, {hex(CTX_OFF)}")
    k.I("s_addc_u32 s41, s61, 0")
    k.I(f"s_add_u32 s42, s60, {hex(H_OFF)}")
    k.I("s_addc_u32 s43, s61, 0")
    k.I(f"s_mov_b32 s44, {hex(16*MB)}")
    k.I(f"s_mov_b32 s45, {2048*2752}")
    k.I(f"s_mov_b32 s46, {256*1024}")
    k.I(f"s_mov_b32 s47, {86*1024}")
    k.I(f"s_cmp_ge_u32 s{sSp}, 6")
    k.I(f"s_cselect_b32 s{S_A}, s42, s40")
    k.I(f"s_cselect_b32 s{S_A+1}, s43, s41")
    k.I(f"s_cselect_b32 s{S_A+2}, s45, s44")
    k.I(f"s_cselect_b32 s{sStr}, s47, s46")
    k.I(f"s_cselect_b32 s{S_B}, s54, s52")
    k.I(f"s_cselect_b32 s{S_B+1}, s55, s53")
    k.I(f"s_mov_b32 s{S_A+3}, 0x00020000")
    k.I(f"s_add_u32 s{sT}, s{sK0}, s{sKl}")
    k.I(f"s_lshl_b32 s{S_B+2}, s{sT}, 10")
    k.I(f"s_mov_b32 s{S_B+3}, 0x00020000")
    srd(k, S_P, 60, 61, 32 * MB, PART_OFF)
    k.I(f"s_lshl_b32 s{sT}, s{sRb}, 3")
    k.I(f"s_add_u32 s{sT}, s{sT}, s{sW}")
    k.I(f"s_mul_i32 s{sAo}, s{sT}, s{sStr}")
    k.I(f"s_lshl_b32 s{sT2}, s{sK0}, 6")
    k.I(f"s_add_u32 s{sAo}, s{sAo}, s{sT2}")
    k.I(f"v_lshlrev_b32 v{vAo}, 4, v{vL}")
    k.I(f"s_lshl_b32 s{sT2}, s{sSp}, 6")
    k.I(f"s_add_u32 s{sT}, s{sT}, s{sT2}")
    k.I(f"s_lshl_b32 s{sT}, s{sT}, 16")
    k.I(f"s_lshl_b32 s{sT2}, s{sCg}, 14")
    k.I(f"s_add_u32 s{sT}, s{sT}, s{sT2}")
    k.I(f"v_add_u32 v{vSt}, s{sT}, v{vAo}")
    k.I(f"v_lshrrev_b32 v{vT}, 4, v{vL}")
    k.I(f"v_lshlrev_b32 v{vT2}, 2, v{vT}")
    k.I(f"v_and_b32 v{vT3}, 15, v{vL}")
    k.I(f"v_xor_b32 v{vT3}, v{vT3}, v{vT2}")
    k.I(f"v_lshlrev_b32 v{vT3}, 4, v{vT3}")
    k.I(f"v_lshl_add_u32 v{vDma}, v{vT}, 10, v{vT3}")
    k.I(f"s_lshl_b32 s{sT}, s{sW}, 13")
    k.I(f"v_add_u32 v{vDma}, s{sT}, v{vDma}")
    k.I(f"s_lshl_b32 s{sSo}, s{sK0}, 10")
    k.I(f"s_lshl_b32 s{sT}, s{sCg}, 8")
    k.I(f"s_add_u32 s{sSo}, s{sSo}, s{sT}")
    k.I(f"s_lshl_b32 s{sWb}, s{sW}, 11")
    k.I(f"v_lshrrev_b32 v{vT}, 5, v{vL}")
    k.I(f"v_lshlrev_b32 v{vT}, 3, v{vT}")
    k.I(f"v_bfe_u32 v{vT2}, v{vL}, 2, 2")
    k.I(f"v_add_u32 v{vT}, v{vT}, v{vT2}")
    k.I(f"v_lshlrev_b32 v{vRd}, 8, v{vT}")
    k.I(f"v_lshl_add_u32 v{vRd}, v{vT2}, 6, v{vRd}")
    k.I(f"v_bfe_u32 v{vT}, v{vL}, 4, 1")
    k.I(f"v_lshl_add_u32 v{vRd}, v{vT}, 5, v{vRd}")
    k.I(f"v_and_b32 v{vT}, 3, v{vL}")
    k.I(f"v_lshl_add_u32 v{vRd}, v{vT}, 3, v{vRd}")
    for t in range(1, 4):
        k.I(f"v_xor_b32 v{vRd+t}, {64*t}, v{vRd}")

    def issue(st):
        slot = st % 4
        k.I(f"s_add_u32 s{sT}, s{sSo}, {st*65536}")
        k.I(f"s_add_u32 m0, s{sWb}, {slot*16384}")
        k.I(f"s_add_u32 s{sT2}, s{sT}, 4096")
        k.I(f"buffer_load_dwordx4 v{vDma}, s[{S_B}:{S_B+3}], s{sT} offen lds")
        k.I(f"s_add_u32 m0, s{sWb}, {slot*16384+1024}")
        k.I("s_nop 0")
        k.I(f"buffer_load_dwordx4 v{vDma}, s[{S_B}:{S_B+3}], s{sT2} offen lds")
        k.I(f"s_add_u32 s{sT3}, s{sAo}, {st*4096}")
        for ks in range(4):
            k.I(f"buffer_load_dwordx4 {v(vA+16*slot+4*ks,4)}, v{vAo}, s[{S_A}:{S_A+3}], s{sT3} offen offset:{ks*1024}")

    for st in range(3):
        issue(st)
    for st in range(NST):
        later = min(NST - 1, st + 2) - st
        k.I(f"s_waitcnt vmcnt({6*later})")
        k.I("s_barrier")
        if st + 3 < NST:
            issue(st + 3)
        slot = st % 4
        seq = [(ks, t) for ks in range(4) for t in range(4)]
        issued = 0
        def rd(i):
            ks, t = seq[i]
            fr = vFr + 4 * (i % NFR)
            off = slot * 16384 + ks * 4096
            k.I(f"ds_read_b64_tr_b16 {v(fr,2)}, v{vRd+t} offset:{off}")
            k.I(f"ds_read_b64_tr_b16 {v(fr+2,2)}, v{vRd+t} offset:{off+1024}")
        for i in range(NFR - 1):
            rd(i); issued += 1
        for i in range(16):
            ks, t = seq[i]
            fr = vFr + 4 * (i % NFR)
            k.I(f"s_waitcnt lgkmcnt({2*(issued-1-i)})")
            acc = v(vAcc + 16 * t, 16)
            c = "0" if (st == 0 and ks == 0) else acc
            k.I(f"v_mfma_f32_32x32x16_bf16 {acc}, {v(fr,4)}, {v(vA+16*slot+4*ks,4)}, {c}")
            if issued < 16:
                rd(issued); issued += 1
    k.nop(12)
    for t in range(4):
        k.I(f"s_mov_b32 s{sT}, {4096*t}")
        for j in range(4):
            k.I(f"buffer_store_dwordx4 {v(vAcc+16*t+4*j,4)}, v{vSt}, s[{S_P}:{S_P+3}], s{sT} offen offset:{1024*j}")
    k.L("L_outg_done")
    k.I("s_endpgm")
    k.meta = dict(vgpr=NV, agpr=0, sgpr=72)
    return k

def gen_final():
    k = Kern("final")
    k.L("final_kernel")
    k.I("s_cmp_ge_u32 s2, 1024")
    k.I("s_cbranch_scc1 L_final_done")
    k.I("s_load_dwordx2 s[4:5], s[0:1], 0")
    k.I("s_load_dwordx2 s[6:7], s[0:1], 72")
    k.I("s_load_dwordx2 s[20:21], s[0:1], 88")
    k.I("s_lshl_b32 s3, s2, 8")
    k.I("v_add_u32 v1, s3, v0")
    k.I("v_lshlrev_b32 v2, 4, v1")
    k.I("v_lshrrev_b32 v3, 12, v1")
    k.I("v_lshlrev_b32 v3, 15, v3")
    k.I("v_and_b32 v4, 31, v1")
    k.I("v_lshl_add_u32 v3, v4, 10, v3")
    k.I("v_bfe_u32 v4, v1, 8, 4")
    k.I("v_lshl_add_u32 v3, v4, 6, v3")
    k.I("v_bfe_u32 v4, v1, 6, 2")
    k.I("v_lshl_add_u32 v3, v4, 4, v3")
    k.I("v_bfe_u32 v4, v1, 5, 1")
    k.I("v_lshl_add_u32 v3, v4, 3, v3")
    k.I("s_waitcnt lgkmcnt(0)")
    srd(k, 8, 4, 5, 2 * MB)
    srd(k, 12, 6, 7, 2 * MB)
    srd(k, 16, 20, 21, 32 * MB, PART_OFF)
    for p in range(8):
        k.I(f"s_mov_b32 s22, {hex(p*4*MB)}")
        k.I(f"buffer_load_dwordx4 {v(8+4*p,4)}, v2, s[16:19], s22 offen")
    k.I("buffer_load_dwordx2 v[4:5], v3, s[8:11], 0 offen")
    k.I("s_waitcnt vmcnt(0)")
    k.I(f"s_mov_b32 s23, {f32bits(-1.4426950408889634)}")
    for e in range(4):
        for p in range(1, 6):
            k.I(f"v_add_f32 v{8+e}, v{8+e}, v{8+4*p+e}")
        k.I(f"v_add_f32 v{32+e}, v{32+e}, v{36+e}")
    for e in range(4):
        round_bf16(k, 8 + e, 8 + e)
        round_bf16(k, 32 + e, 32 + e)
    for e in range(4):
        k.I(f"v_mul_f32 v{40+e}, s23, v{32+e}")
    for e in range(4):
        k.I(f"v_exp_f32 v{40+e}, v{40+e}")
    k.I("s_nop 0")
    for e in range(4):
        k.I(f"v_add_f32 v{40+e}, 1.0, v{40+e}")
    for e in range(4):
        k.I(f"v_rcp_f32 v{40+e}, v{40+e}")
    k.I("s_nop 0")
    for e in range(4):
        k.I(f"v_mul_f32 v{40+e}, v{32+e}, v{40+e}")
    for e in range(4):
        round_bf16(k, 40 + e, 40 + e)
    for e in range(4):
        k.I(f"v_mul_f32 v{40+e}, v{8+e}, v{40+e}")
    for e in range(4):
        round_bf16(k, 40 + e, 40 + e)
    k.I("v_lshlrev_b32 v44, 16, v4")
    k.I("v_and_b32 v45, 0xffff0000, v4")
    k.I("v_lshlrev_b32 v46, 16, v5")
    k.I("v_and_b32 v47, 0xffff0000, v5")
    for e in range(4):
        k.I(f"v_add_f32 v{40+e}, v{44+e}, v{40+e}")
    k.I("v_cvt_pk_bf16_f32 v4, v40, v41")
    k.I("v_cvt_pk_bf16_f32 v5, v42, v43")
    k.I("buffer_store_dwordx2 v[4:5], v3, s[12:15], 0 offen")
    k.L("L_final_done")
    k.I("s_endpgm")
    k.meta = dict(vgpr=48, agpr=0, sgpr=32)
    return k
```

```python
import sys, os
sys.path.insert(0, os.path.dirname(__file__))
from asmlib import *
import k01

NAME = "recurrent_scan__compressed_kv_cla__dense_activation_relu__prompt"
OUT = f"cdna_kernels/{NAME}.s"

def build(kernels, out=OUT):
    hdr = []
    for k, label, grid, block, lds in kernels:
        hdr.append(f"; @launch kernel={label} grid=({grid},1,1) block=({block},1,1) lds={lds}")
    body = ['.amdgcn_target "amdgcn-amd-amdhsa--gfx950"', ".text"]
    seen = set()
    for k, label, grid, block, lds in kernels:
        if label in seen: continue
        seen.add(label)
        body.append(f".globl {label}")
        body.append(".p2align 8")
        body.append(f".type {label},@function")
        t = k.text()
        if os.environ.get("RT"):
            st = "\n".join(["  s_load_dwordx2 s[84:85], s[0:1], 80", "  s_memrealtime s[88:89]", "  s_waitcnt lgkmcnt(0)",
                "  s_mov_b32 s86, 256", "  s_mov_b32 s87, 0x00020000", "  s_not_b32 s88, s88", "  v_mov_b32 v1, s88", "  v_lshlrev_b32 v2, 8, v0",
                "  buffer_atomic_umax v1, v2, s[84:87], 0 offen offset:240", "  s_waitcnt vmcnt(0)"])
            en = "\n".join(["  s_waitcnt vmcnt(0) lgkmcnt(0)", "  s_memrealtime s[88:89]", "  s_waitcnt lgkmcnt(0)", "  v_mov_b32 v1, s88", "  v_lshlrev_b32 v2, 8, v0",
                "  buffer_atomic_umax v1, v2, s[84:87], 0 offen offset:244", "  s_endpgm"])
            t = t.replace(label + ":", label + ":\n" + st, 1)
            t = t.replace("  s_endpgm", en, 1)
            k.meta["sgpr"] = 100
        probs = check_hazards(t)
        for p in probs:
            print(f"HAZARD[{label}] {p}")
        body.append(t)
    body.append('.section .rodata,"a"')
    seen = set()
    for k, label, grid, block, lds in kernels:
        if label in seen: continue
        seen.add(label)
        m = k.meta
        acc = (m["vgpr"] + 3) // 4 * 4
        nfv = acc + m["agpr"] if m["agpr"] else m["vgpr"]
        body.append(".p2align 6")
        body.append(f".amdhsa_kernel {label}")
        body.append(f"  .amdhsa_next_free_vgpr {nfv}")
        body.append(f"  .amdhsa_next_free_sgpr {m['sgpr']}")
        body.append(f"  .amdhsa_accum_offset {acc}")
        body.append("  .amdhsa_group_segment_fixed_size 0")
        body.append("  .amdhsa_kernarg_size 96")
        body.append("  .amdhsa_user_sgpr_count 2")
        body.append("  .amdhsa_user_sgpr_kernarg_segment_ptr 1")
        body.append("  .amdhsa_system_sgpr_workgroup_id_x 1")
        body.append(".end_amdhsa_kernel")
    open(out, "w").write("\n".join(hdr + body) + "\n")

def main():
    ks = []
    ks.append((k01.gen_ln(), "ln_kernel", 1024, 256, 0))
    ks.append((k01.gen_proj(), "proj_kernel", 256, 512, 65536))
    try:
        if os.environ.get("ATT", "D") == "E":
            import k2
            ks.append((k2.gen_attn(), "attn_kernel", 256, 256, 163840))
        else:
            import k2d
            ks.append((k2d.gen_attn(), "attn_kernel", 256, 512, 163840))
    except ImportError:
        pass
    try:
        import k34
        ks.append((k34.gen_outgemm(), "outg_kernel", 256, 512, 65536))
        ks.append((k34.gen_final(), "final_kernel", 1024, 256, 0))
    except ImportError:
        pass
    build(ks, os.environ.get('GEN_OUT', OUT))

if __name__ == "__main__":
    main()
```

```python
from asmlib import *

MB = 1 << 20
XN_OFF = 0
CKF_OFF = 2 * MB
QW_OFF = 16 * MB
KW_OFF = 32 * MB
VT_OFF = 48 * MB
H_OFF = 64 * MB
CTX_OFF = 80 * MB
PART_OFF = 96 * MB
WS_SIZE = 128 * MB
BIGOFF = 0x7FFFFFF0

QSCALE = 1.4426950408889634 / (128.0 ** 0.5)

import struct
def f32bits(x):
    return "0x%08x" % struct.unpack("<I", struct.pack("<f", x))[0]

def srd(k, d, base_lo, base_hi, size, add=0):
    if add:
        k.I(f"s_add_u32 s{d}, s{base_lo}, {hex(add)}")
        k.I(f"s_addc_u32 s{d+1}, s{base_hi}, 0")
    else:
        k.I(f"s_mov_b32 s{d}, s{base_lo}")
        k.I(f"s_mov_b32 s{d+1}, s{base_hi}")
    k.I(f"s_mov_b32 s{d+2}, {hex(size)}")
    k.I(f"s_mov_b32 s{d+3}, 0x00020000")

def wave_allreduce_add(k, vx, vt):
    for m in (0x041F, 0x081F, 0x101F, 0x201F, 0x401F):
        k.I(f"ds_swizzle_b32 v{vt}, v{vx} offset:{hex(m)}")
        k.I("s_waitcnt lgkmcnt(0)")
        k.I(f"v_add_f32 v{vx}, v{vx}, v{vt}")
    k.I(f"v_mov_b32 v{vt}, v{vx}")
    k.I("s_nop 1")
    k.I(f"v_permlane32_swap_b32 v{vt}, v{vx}")
    k.I(f"v_add_f32 v{vx}, v{vx}, v{vt}")

def round_bf16(k, vd, vs):
    k.I(f"v_cvt_pk_bf16_f32 v{vd}, v{vs}, v{vs}")
    k.I(f"v_and_b32 v{vd}, 0xffff0000, v{vd}")


def gen_ln():
    k = Kern("ln")
    k.L("ln_kernel")
    k.I("s_cmp_ge_u32 s2, 1024")
    k.I("s_cbranch_scc1 L_ln_done")
    k.I("s_load_dwordx4 s[4:7], s[0:1], 0")
    k.I("s_load_dwordx2 s[16:17], s[0:1], 88")
    k.I("v_lshrrev_b32 v1, 6, v0")
    k.I("v_and_b32 v2, 63, v0")
    k.I("s_and_b32 s3, s2, 511")
    k.I("s_lshl_b32 s3, s3, 2")
    k.I("v_add_u32 v1, s3, v1")
    k.I("v_lshlrev_b32 v3, 10, v1")
    k.I("v_lshl_add_u32 v3, v2, 4, v3")
    k.I("v_lshrrev_b32 v16, 5, v1")
    k.I("v_lshlrev_b32 v16, 15, v16")
    k.I("v_lshrrev_b32 v17, 1, v2")
    k.I("v_lshl_add_u32 v16, v17, 10, v16")
    k.I("v_and_b32 v17, 1, v2")
    k.I("v_lshl_add_u32 v16, v17, 9, v16")
    k.I("v_and_b32 v17, 31, v1")
    k.I("v_lshl_add_u32 v1, v17, 4, v16")
    k.I("s_waitcnt lgkmcnt(0)")
    k.I("s_cmp_ge_u32 s2, 512")
    k.I("s_cselect_b32 s8, s6, s4")
    k.I("s_cselect_b32 s9, s7, s5")
    k.I(f"s_mov_b32 s10, {hex(2*MB)}")
    k.I("s_mov_b32 s11, 0x00020000")
    k.I(f"s_cselect_b32 s18, {hex(CKF_OFF)}, {hex(XN_OFF)}")
    k.I("s_add_u32 s12, s16, s18")
    k.I("s_addc_u32 s13, s17, 0")
    k.I(f"s_mov_b32 s14, {hex(2*MB)}")
    k.I("s_mov_b32 s15, 0x00020000")
    k.I("buffer_load_dwordx4 v[4:7], v3, s[8:11], 0 offen")
    k.I("s_cmp_ge_u32 s2, 512")
    k.I("s_waitcnt vmcnt(0)")
    k.I("s_cbranch_scc1 L_ln_store")
    for i in range(4):
        k.I(f"v_lshlrev_b32 v{8+2*i}, 16, v{4+i}")
        k.I(f"v_and_b32 v{9+2*i}, 0xffff0000, v{4+i}")
    k.I("v_add_f32 v16, v8, v9")
    k.I("v_add_f32 v17, v10, v11")
    k.I("v_add_f32 v18, v12, v13")
    k.I("v_add_f32 v19, v14, v15")
    k.I("v_add_f32 v16, v16, v17")
    k.I("v_add_f32 v18, v18, v19")
    k.I("v_add_f32 v16, v16, v18")
    wave_allreduce_add(k, 16, 17)
    k.I(f"v_mul_f32 v16, {f32bits(1.0/512)}, v16")
    k.I("v_mov_b32 v18, 0")
    for i in range(8):
        k.I(f"v_sub_f32 v19, v{8+i}, v16")
        k.I("v_fmac_f32 v18, v19, v19")
    wave_allreduce_add(k, 18, 17)
    k.I(f"v_mul_f32 v18, {f32bits(1.0/512)}, v18")
    round_bf16(k, 16, 16)
    round_bf16(k, 18, 18)
    k.I(f"v_add_f32 v18, {f32bits(1e-5)}, v18")
    round_bf16(k, 18, 18)
    k.I("v_sqrt_f32 v18, v18")
    k.I("s_nop 0")
    round_bf16(k, 18, 18)
    k.I("v_rcp_f32 v19, v18")
    for i in range(8):
        k.I(f"v_sub_f32 v{8+i}, v{8+i}, v16")
    for i in range(4):
        k.I(f"v_cvt_pk_bf16_f32 v{4+i}, v{8+2*i}, v{9+2*i}")
    for i in range(4):
        k.I(f"v_lshlrev_b32 v{8+2*i}, 16, v{4+i}")
        k.I(f"v_and_b32 v{9+2*i}, 0xffff0000, v{4+i}")
    for i in range(8):
        k.I(f"v_mul_f32 v20, v{8+i}, v19")
        k.I(f"v_fma_f32 v21, -v20, v18, v{8+i}")
        k.I(f"v_fma_f32 v{8+i}, v21, v19, v20")
    for i in range(4):
        k.I(f"v_cvt_pk_bf16_f32 v{4+i}, v{8+2*i}, v{9+2*i}")
    k.L("L_ln_store")
    k.I("buffer_store_dwordx4 v[4:7], v1, s[12:15], 0 offen")
    k.L("L_ln_done")
    k.I("s_endpgm")
    k.meta = dict(vgpr=24, agpr=0, sgpr=24)
    return k

import os
PFL = set(os.environ.get("PROJ_FLAGS", "").split(","))
def gen_proj():
    k = Kern("proj")
    def stamp_dyn():
        if "stamp" not in PFL: return
        k.I("s_memtime s[80:81]")
        k.I("s_waitcnt lgkmcnt(0)")
        k.I("v_mov_b32 v125, s80")
        k.I("v_cmp_eq_u32 vcc, s82, v124")
        k.I("s_nop 1")
        k.I("v_cndmask_b32 v126, v126, v125, vcc")
        k.I("s_add_u32 s82, s82, 1")
    S_A = 8; S_WS = 12; S_BC = 16; S_BN = 20
    sPlo = 24; sPhi = 26; sSzHi = 28; sStrHi = 29
    sU = 30; sUend = 31; sWb = 32; sIsX = 33
    sSoC = 34; sS8C = 35; sS128C = 36
    sSoN = 37; sS8N = 38; sS128N = 39
    sT = 40; sT2 = 41; sM = 42
    sRb32 = 44; sOutU = 45
    sScale = 46
    sLo = 64; sSt0 = 65; sSt1 = 66; sSwap = 67; sPar = 68; sGrp = 69
    vL = 1; vT = 2; vT2 = 3; vT3 = 4
    vRd0 = 5; vRd1 = 6
    vDmaLo = 7; vDmaHi = 8; vDmaC = 9; vDmaN = 10; vL16 = 11
    vAcc = [12, 44]
    vPk = 76
    vFr = 92
    NFR = 8
    NV = vFr + NFR * 4
    AHEAD = int(os.environ.get("PROJ_AHEAD", "5"))
    BARPOS = 8

    k.L("proj_kernel")
    k.I("s_cmp_ge_u32 s2, 256")
    k.I("s_cbranch_scc1 L_proj_done")
    if "stamp" in PFL:
        k.I("s_mov_b32 s82, 0")
        k.I("v_mov_b32 v126, 0")
        k.I("v_and_b32 v124, 63, v0")
        k.I("s_memrealtime s[92:93]")
    stamp_dyn()
    k.I("s_load_dwordx4 s[52:55], s[0:1], 16")
    k.I("s_load_dwordx2 s[56:57], s[0:1], 32")
    k.I("s_load_dwordx2 s[58:59], s[0:1], 56")
    k.I("s_load_dwordx2 s[60:61], s[0:1], 88")
    k.I("s_and_b32 s62, s2, 7")
    k.I("s_lshr_b32 s63, s2, 3")
    k.I(f"s_and_b32 s{sRb32}, s63, 7")
    k.I("s_lshr_b32 s63, s63, 3")
    k.I("s_lshl_b32 s62, s62, 2")
    k.I("s_add_u32 s62, s62, s63")
    k.I("s_cmp_lt_u32 s62, 13")
    k.I(f"s_cselect_b32 s{sIsX}, 1, 0")
    k.I("s_sub_u32 s63, s62, 13")
    k.I("s_cselect_b32 s62, s62, s63")
    k.I(f"s_mul_i32 s{sU}, s62, 7")
    k.I(f"s_add_u32 s{sUend}, s{sU}, 7")
    k.I(f"s_cmp_eq_u32 s{sIsX}, 1")
    k.I("s_mov_b32 s63, 128")
    k.I("s_cselect_b32 s63, 86, s63")
    k.I(f"s_min_u32 s{sUend}, s{sUend}, s63")
    k.I(f"v_and_b32 v{vL}, 63, v0")
    k.I(f"v_lshrrev_b32 v{vT}, 6, v0")
    k.I(f"v_lshlrev_b32 v{vL16}, 4, v{vL}")
    k.I(f"v_readfirstlane_b32 s{sWb}, v{vT}")
    k.I("s_waitcnt lgkmcnt(0)")
    k.I(f"s_cmp_eq_u32 s{sIsX}, 1")
    k.I(f"s_cselect_b32 s{sPlo}, s52, s54")
    k.I(f"s_cselect_b32 s{sPlo+1}, s53, s55")
    k.I(f"s_cselect_b32 s{sPhi}, s58, s56")
    k.I(f"s_cselect_b32 s{sPhi+1}, s59, s57")
    k.I(f"s_mov_b32 s{sT}, {512*1376*2}")
    k.I(f"s_mov_b32 s{sT2}, {4*MB}")
    k.I(f"s_cselect_b32 s{sSzHi}, s{sT}, s{sT2}")
    k.I(f"s_mov_b32 s{sT}, 2752")
    k.I(f"s_mov_b32 s{sT2}, 8192")
    k.I(f"s_cselect_b32 s{sStrHi}, s{sT}, s{sT2}")
    k.I(f"s_cselect_b32 s{sT}, {hex(XN_OFF)}, {hex(CKF_OFF)}")
    k.I(f"s_add_u32 s{S_A}, s60, s{sT}")
    k.I(f"s_addc_u32 s{S_A+1}, s61, 0")
    k.I(f"s_mov_b32 s{S_A+2}, {hex(2*MB)}")
    k.I(f"s_mov_b32 s{S_A+3}, 0x00020000")
    srd(k, S_WS, 60, 61, WS_SIZE)
    k.I(f"s_lshl_b32 s{sRb32}, s{sRb32}, 3")
    k.I(f"s_add_u32 s{sRb32}, s{sRb32}, s{sWb}")
    k.I(f"s_lshl_b32 s62, s{sRb32}, 15")
    for ks in range(8):
        if ks == 4:
            k.I("s_add_u32 s62, s62, 4096")
        k.I(f"buffer_load_dwordx4 {a(4*ks,4)}, v{vL16}, s[{S_A}:{S_A+3}], s62 offen offset:{(ks%4)*1024}")
    k.I(f"v_lshrrev_b32 v{vT}, 3, v{vL}")
    k.I(f"s_lshl_b32 s{sT}, s{sWb}, 4")
    k.I(f"v_add_u32 v{vT}, s{sT}, v{vT}")
    k.I(f"v_and_b32 v{vT2}, 7, v{vL}")
    k.I(f"v_lshrrev_b32 v{vT3}, 2, v{vL}")
    k.I(f"v_and_b32 v{vT3}, 4, v{vT3}")
    k.I(f"v_xor_b32 v{vT2}, v{vT2}, v{vT3}")
    k.I(f"v_lshlrev_b32 v{vT2}, 4, v{vT2}")
    k.I(f"v_lshl_add_u32 v{vDmaLo}, v{vT}, 13, v{vT2}")
    k.I(f"v_mul_lo_u32 v{vDmaHi}, v{vT}, s{sStrHi}")
    k.I(f"v_add_u32 v{vDmaHi}, v{vDmaHi}, v{vT2}")
    k.I(f"v_lshrrev_b32 v{vT}, 5, v{vL}")
    k.I(f"v_lshlrev_b32 v{vT}, 3, v{vT}")
    k.I(f"v_bfe_u32 v{vT2}, v{vL}, 2, 2")
    k.I(f"v_add_u32 v{vT}, v{vT}, v{vT2}")
    k.I(f"v_lshlrev_b32 v{vRd0}, 7, v{vT}")
    k.I(f"v_bfe_u32 v{vT}, v{vL}, 3, 1")
    k.I(f"v_lshl_add_u32 v{vRd0}, v{vT}, 6, v{vRd0}")
    k.I(f"v_bfe_u32 v{vT}, v{vL}, 4, 1")
    k.I(f"v_lshl_add_u32 v{vRd0}, v{vT}, 5, v{vRd0}")
    k.I(f"v_and_b32 v{vT}, 3, v{vL}")
    k.I(f"v_lshl_add_u32 v{vRd0}, v{vT}, 3, v{vRd0}")
    k.I(f"v_xor_b32 v{vRd1}, 64, v{vRd0}")
    k.I(f"s_mov_b32 s{sSt0}, {hex(BIGOFF)}")
    k.I(f"s_mov_b32 s{sSt1}, {hex(BIGOFF)}")
    k.I(f"s_mov_b32 s{sSwap}, 0")
    k.I(f"s_mov_b32 s{sPar}, 0")
    k.I(f"s_mov_b32 s{sScale}, 1.0")
    k.I(f"s_mov_b32 s{sScale+1}, 1.0")
    k.I(f"s_mov_b32 s{sLo}, 0")
    k.I(f"s_lshl_b32 s{sWb}, s{sWb}, 11")

    SET = [dict(D=16, so=34, s8=35, s128=36, vd=9), dict(D=20, so=37, s8=38, s128=39, vd=10)]
    sVthr = 69
    k.I(f"s_cmp_eq_u32 s{sIsX}, 1")
    k.I(f"s_cselect_b32 s{sVthr}, 0x7fffffff, 64")

    def desc_groups(ur, S):
        D, so, s8, s128, vd = S["D"], S["so"], S["s8"], S["s128"], S["vd"]
        return [[f"s_cmp_ge_u32 s{ur}, 64",
                 f"s_cselect_b32 s{D}, s{sPhi}, s{sPlo}",
                 f"s_cselect_b32 s{D+1}, s{sPhi+1}, s{sPlo+1}",
                 f"s_cselect_b32 s{D+2}, s{sSzHi}, {hex(4*MB)}"],
                [f"s_cmp_ge_u32 s{ur}, 64",
                 f"s_cselect_b32 s{s8}, s{sStrHi}, 8192",
                 f"s_cselect_b64 s[{sM}:{sM+1}], -1, 0",
                 f"v_cndmask_b32 v{vd}, v{vDmaLo}, v{vDmaHi}, s[{sM}:{sM+1}]"],
                [f"s_mov_b32 s{D+3}, 0x00020000",
                 f"s_cmp_ge_u32 s{ur}, s{sUend}",
                 f"s_cselect_b32 s{D+2}, 0, s{D+2}"],
                [f"s_and_b32 s{so}, s{ur}, 63",
                 f"s_lshl_b32 s{so}, s{so}, 7",
                 f"s_lshl_b32 s{s128}, s{s8}, 7",
                 f"s_lshl_b32 s{s8}, s{s8}, 3"]]

    def dma(stage, slot, S):
        D, so, s8, s128, vd = S["D"], S["so"], S["s8"], S["s128"], S["vd"]
        k.I(f"s_mul_i32 s{sT}, s{s128}, {stage}")
        k.I(f"s_add_u32 s{sT}, s{sT}, s{so}")
        k.I(f"s_add_u32 m0, s{sWb}, {slot*16384}")
        k.I(f"s_add_u32 s{sT2}, s{sT}, s{s8}")
        k.I(f"buffer_load_dwordx4 v{vd}, s[{D}:{D+3}], s{sT} offen lds")
        k.I(f"s_add_u32 m0, s{sWb}, {slot*16384+1024}")
        k.I("s_nop 0")
        k.I(f"buffer_load_dwordx4 v{vd}, s[{D}:{D+3}], s{sT2} offen lds")

    def aloads(lo, hi):
        for ks in range(lo, hi):
            if ks and ks % 4 == 0:
                k.I("s_add_u32 s62, s62, 4096")
            k.I(f"buffer_load_dwordx4 {a(4*ks,4)}, v{vL16}, s[{S_A}:{S_A+3}], s62 offen offset:{(ks%4)*1024}")

    for g in desc_groups(sU, SET[0]):
        for x in g: k.I(x)
    dma(0, 0, SET[0]); dma(1, 1, SET[0])
    k.I(f"s_add_u32 s70, s{sU}, 1")
    for g in desc_groups(70, SET[1]):
        for x in g: k.I(x)
    k.I("s_waitcnt vmcnt(2)")
    k.I("s_barrier")

    def rd(i):
        i2 = i % 64
        j, r = divmod(i2, 16)
        ks, t = divmod(r, 2)
        fr = vFr + 4 * (i % NFR)
        base = vRd0 if t == 0 else vRd1
        off = j * 16384 + ks * 2048
        k.I(f"ds_read_b64_tr_b16 {v(fr,2)}, v{base} offset:{off}")
        k.I(f"ds_read_b64_tr_b16 {v(fr+2,2)}, v{base} offset:{off+512}")
    for i in range(AHEAD):
        rd(i)

    def pack_items(par):
        it = []
        base = vAcc[par]
        for x in range(16):
            it.append(f"v_mul_f32 v{base+2*x}, s{sScale}, v{base+2*x}")
            it.append(f"v_mul_f32 v{base+2*x+1}, s{sScale}, v{base+2*x+1}")
            it.append(f"v_max_f32 v{base+2*x}, s{sLo}, v{base+2*x}")
            it.append(f"v_max_f32 v{base+2*x+1}, s{sLo}, v{base+2*x+1}")
            it.append(f"v_cvt_pk_bf16_f32 v{vPk+x}, v{base+2*x}, v{base+2*x+1}")
        return it
    def swaps():
        lab = k.newlabel("nosw")
        k.I(f"s_cmp_eq_u32 s{sSwap}, 0")
        k.I(f"s_cbranch_scc1 {lab}")
        for t in range(2):
            for jp in range(2):
                b = vPk + 8 * t + 4 * jp
                k.I(f"v_permlane32_swap_b32 v{b}, v{b+2}")
                k.I(f"v_permlane32_swap_b32 v{b+1}, v{b+3}")
        k.L(lab)
    def stores():
        for t, ss in ((0, sSt0), (1, sSt1)):
            for jp in range(2):
                k.I(f"buffer_store_dwordx4 {v(vPk+8*t+4*jp,4)}, v{vL16}, s[{S_WS}:{S_WS+3}], s{ss} offen offset:{1024*jp}")

    def setpend_groups():
        A_, B_, C_, D_ = 71, 72, 73, 74
        return [[f"s_and_b32 s{A_}, s{sU}, 63",
                 f"s_lshr_b32 s{B_}, s{A_}, 1",
                 f"s_lshl_b32 s{B_}, s{B_}, 6",
                 f"s_add_u32 s{B_}, s{B_}, s{sRb32}"],
                [f"s_lshl_b32 s{B_}, s{B_}, 13",
                 f"s_and_b32 s{C_}, s{A_}, 1",
                 f"s_lshl_b32 s{C_}, s{C_}, 12",
                 f"s_add_u32 s{B_}, s{B_}, s{C_}"],
                [f"s_mul_i32 s{C_}, s{sRb32}, 86",
                 f"s_lshl_b32 s{D_}, s{A_}, 2",
                 f"s_add_u32 s{C_}, s{C_}, s{D_}",
                 f"s_lshl_b32 s{C_}, s{C_}, 10"],
                [f"s_add_u32 s{C_}, s{C_}, {hex(H_OFF)}",
                 f"s_mov_b32 s{D_}, {hex(KW_OFF)}"],
                [f"s_cmp_ge_u32 s{sU}, 64",
                 f"s_cselect_b32 s{D_}, {hex(VT_OFF)}, s{D_}",
                 f"s_cselect_b32 s{sSwap}, 0, 1"],
                [f"s_cmp_eq_u32 s{sIsX}, 1",
                 f"s_cselect_b32 s{D_}, {hex(QW_OFF)}, s{D_}",
                 f"s_cselect_b32 s{sSwap}, 1, s{sSwap}",
                 f"s_add_u32 s{sSt0}, s{B_}, s{D_}"],
                [f"s_cmp_ge_u32 s{sU}, 64",
                 f"s_cselect_b32 s{D_}, s{sIsX}, 0"],
                [f"s_cmp_eq_u32 s{D_}, 1",
                 f"s_cselect_b32 s{sSt0}, s{C_}, s{sSt0}",
                 f"s_cselect_b32 s{sLo}, 0, 0xff800000",
                 f"s_add_u32 s{sSt1}, s{sSt0}, 2048"],
                [f"s_cmp_eq_u32 s{sU}, 85",
                 f"s_cselect_b32 s{D_}, s{D_}, 0"],
                [f"s_cmp_eq_u32 s{D_}, 1",
                 f"s_cselect_b32 s{sSt1}, {hex(BIGOFF)}, s{sSt1}"],
                [f"s_cmp_lt_u32 s{sU}, 64",
                 f"s_cselect_b32 s{D_}, s{sIsX}, 0"],
                [f"s_cmp_eq_u32 s{D_}, 1",
                 f"s_cselect_b32 s{sScale}, {f32bits(QSCALE)}, 1.0"]]

    DP = int(os.environ.get("PROJ_DP", "4")); SP = int(os.environ.get("PROJ_SP", "6"))
    def body(orient, par, first=False):
        stamp_dyn()
        NW = [18, 10, 6, 6] if first else [2, 2, 6, 6]
        pk = pack_items(1 - par)
        f1 = [[f"s_add_u32 s70, s{sU}, 2"]] + desc_groups(70, SET[par])
        f2 = setpend_groups()
        vm = ["A7", "D0", "D0", "D1", "D1"]
        def wait_for(tag):
            idx = max(n for n, x in enumerate(vm) if x == tag)
            k.I(f"s_waitcnt vmcnt({len(vm) - 1 - idx})")
        anext = [8]
        for i in range(64):
            j, r = divmod(i, 16)
            ks, t = divmod(r, 2)
            fr = vFr + 4 * (i % NFR)
            if first and r == 0 and j > 0:
                wait_for(f"A{8*j+7}")
            k.I(f"s_waitcnt lgkmcnt({2*(AHEAD-1)})")
            kg = 8 * j + ks
            acc = v(vAcc[par] + 16 * t, 16)
            c = "0" if kg == 0 else acc
            if orient == "N":
                k.I(f"v_mfma_f32_32x32x16_bf16 {acc}, {v(fr,4)}, {a(4*kg,4)}, {c}")
            else:
                k.I(f"v_mfma_f32_32x32x16_bf16 {acc}, {a(4*kg,4)}, {v(fr,4)}, {c}")
            if r == BARPOS - 1:
                if first and j < 3: wait_for(f"D{j+1}")
                else: k.I(f"s_waitcnt vmcnt({NW[j]})")
                k.I("s_barrier")
            if r == BARPOS - 1 + DP:
                if j == 0: dma(3, 3, SET[par])
                else: dma(j - 1, j - 1, SET[1 - par])
                vm.extend([f"D{j+3}"] * 2)
            elif first and i == BARPOS:
                dma(2, 2, SET[par]); vm.extend(["D2"] * 2)
            elif r == BARPOS - 1 + SP and j == 1:
                stores(); vm.extend(["S"] * 4)
            elif first and anext[0] < 32 and r != BARPOS - 1:
                aloads(anext[0], anext[0] + 1); vm.append(f"A{anext[0]}"); anext[0] += 1
            rd(i + AHEAD)
            if i >= 2 and i < 17:
                for _ in range(6):
                    if pk: k.I(pk.pop(0))
            if j == 1 and r == 1:
                assert not pk
                swaps()
            if i >= 18 and f1 and r not in (BARPOS - 1, BARPOS - 1 + DP, BARPOS - 1 + SP):
                for x in f1.pop(0): k.I(x)
            elif i >= 32 and f2 and r not in (BARPOS - 1, BARPOS - 1 + DP):
                for x in f2.pop(0): k.I(x)
        assert not f1 and not f2
        k.I(f"s_add_u32 s{sU}, s{sU}, 1")
        k.I(f"s_branch L_proj_disp{1-par}")

    k.I(f"s_cmp_ge_u32 s{sU}, s{sVthr}")
    k.I("s_cbranch_scc1 L_proj_fV")
    body("N", 0, True)
    k.L("L_proj_fV")
    body("V", 0, True)
    for par in range(2):
        k.L(f"L_proj_disp{par}")
        k.I(f"s_cmp_ge_u32 s{sU}, s{sUend}")
        k.I(f"s_cbranch_scc1 L_proj_fin{1-par}")
        k.I(f"s_cmp_ge_u32 s{sU}, s{sVthr}")
        k.I(f"s_cbranch_scc1 L_proj_bV{par}")
        body("N", par)
        k.L(f"L_proj_bV{par}")
        body("V", par)
    for par in range(2):
        k.L(f"L_proj_fin{par}")
        k.nop(8)
        for x in pack_items(par): k.I(x)
        if par == 0: k.I("s_branch L_proj_fin")
    k.L("L_proj_fin")
    k.I("s_nop 1")
    swaps()
    stores()
    stamp_dyn()
    if "stamp" in PFL:
        k.I("s_memrealtime s[94:95]")
        k.I("s_waitcnt lgkmcnt(0)")
        k.I("s_sub_u32 s94, s94, s92")
        k.I("v_mov_b32 v125, s94")
        k.I("v_cmp_eq_u32 vcc, 47, v124")
        k.I("s_nop 1")
        k.I("v_cndmask_b32 v126, v126, v125, vcc")
        k.I("s_cmp_lg_u32 s2, %s" % os.environ.get("STWG", "8"))
        k.I("s_cbranch_scc1 L_proj_done")
        k.I("s_load_dwordx2 s[70:71], s[0:1], 80")
        k.I("s_waitcnt lgkmcnt(0)")
        k.I("s_mov_b32 s76, s70")
        k.I("s_mov_b32 s77, s71")
        k.I("s_mov_b32 s78, 256")
        k.I("s_mov_b32 s79, 0x00020000")
        k.I("v_lshlrev_b32 v125, 2, v0")
        k.I("buffer_store_dword v126, v125, s[76:79], 0 offen")
    k.L("L_proj_done")
    k.I("s_endpgm")
    k.meta = dict(vgpr=128, agpr=128, sgpr=100)
    return k
```

```python
from asmlib import *
from k01 import *

def gen_outgemm():
    k = Kern("outg")
    S_A = 8; S_B = 12; S_P = 16
    sW = 24; sRb = 25; sCg = 26; sSp = 27; sK0 = 28; sKl = 29; sT = 30; sT2 = 31; sWb = 32; sSo = 33; sStr = 34; sAo = 35; sT3 = 36
    vL = 1; vT = 2; vT2 = 3; vT3 = 4
    vRd = 5
    vDma = 9; vAo = 10; vSt = 11
    vAcc = 16
    vA = 80
    vFr = 144; NFR = 8
    NV = vFr + 4 * NFR
    NST = 11
    k.L("outg_kernel")
    k.I("s_cmp_ge_u32 s2, 256")
    k.I("s_cbranch_scc1 L_outg_done")
    k.I("s_load_dwordx2 s[52:53], s[0:1], 40")
    k.I("s_load_dwordx2 s[54:55], s[0:1], 64")
    k.I("s_load_dwordx2 s[60:61], s[0:1], 88")
    k.I(f"s_and_b32 s{sSp}, s2, 7")
    k.I("s_lshr_b32 s63, s2, 3")
    k.I(f"s_and_b32 s{sRb}, s63, 7")
    k.I(f"s_lshr_b32 s{sCg}, s63, 3")
    k.I(f"s_mul_i32 s{sK0}, s{sSp}, 22")
    k.I(f"s_mul_i32 s{sT}, s{sSp}, 21")
    k.I(f"s_add_u32 s{sT}, s{sT}, 2")
    k.I(f"s_cmp_lt_u32 s{sSp}, 2")
    k.I(f"s_cselect_b32 s{sK0}, s{sK0}, s{sT}")
    k.I(f"s_cselect_b32 s{sKl}, 22, 21")
    k.I(f"s_sub_u32 s{sT}, s{sSp}, 6")
    k.I(f"s_mul_i32 s{sT}, s{sT}, 22")
    k.I(f"s_cmp_ge_u32 s{sSp}, 6")
    k.I(f"s_cselect_b32 s{sK0}, s{sT}, s{sK0}")
    k.I(f"s_cmp_eq_u32 s{sSp}, 6")
    k.I(f"s_cselect_b32 s{sKl}, 22, s{sKl}")
    k.I(f"s_lshl_b32 s{sK0}, s{sK0}, 5")
    k.I(f"s_lshl_b32 s{sKl}, s{sKl}, 5")
    k.I(f"v_and_b32 v{vL}, 63, v0")
    k.I(f"v_lshrrev_b32 v{vT}, 6, v0")
    k.I("s_nop 0")
    k.I(f"v_readfirstlane_b32 s{sW}, v{vT}")
    k.I("s_waitcnt lgkmcnt(0)")
    k.I(f"s_add_u32 s40, s60, {hex(CTX_OFF)}")
    k.I("s_addc_u32 s41, s61, 0")
    k.I(f"s_add_u32 s42, s60, {hex(H_OFF)}")
    k.I("s_addc_u32 s43, s61, 0")
    k.I(f"s_mov_b32 s44, {hex(16*MB)}")
    k.I(f"s_mov_b32 s45, {2048*2752}")
    k.I(f"s_mov_b32 s46, {256*1024}")
    k.I(f"s_mov_b32 s47, {86*1024}")
    k.I(f"s_cmp_ge_u32 s{sSp}, 6")
    k.I(f"s_cselect_b32 s{S_A}, s42, s40")
    k.I(f"s_cselect_b32 s{S_A+1}, s43, s41")
    k.I(f"s_cselect_b32 s{S_A+2}, s45, s44")
    k.I(f"s_cselect_b32 s{sStr}, s47, s46")
    k.I(f"s_cselect_b32 s{S_B}, s54, s52")
    k.I(f"s_cselect_b32 s{S_B+1}, s55, s53")
    k.I(f"s_mov_b32 s{S_A+3}, 0x00020000")
    k.I(f"s_add_u32 s{sT}, s{sK0}, s{sKl}")
    k.I(f"s_lshl_b32 s{S_B+2}, s{sT}, 10")
    k.I(f"s_mov_b32 s{S_B+3}, 0x00020000")
    srd(k, S_P, 60, 61, 32 * MB, PART_OFF)
    k.I(f"s_lshl_b32 s{sT}, s{sRb}, 3")
    k.I(f"s_add_u32 s{sT}, s{sT}, s{sW}")
    k.I(f"s_mul_i32 s{sAo}, s{sT}, s{sStr}")
    k.I(f"s_lshl_b32 s{sT2}, s{sK0}, 6")
    k.I(f"s_add_u32 s{sAo}, s{sAo}, s{sT2}")
    k.I(f"v_lshlrev_b32 v{vAo}, 4, v{vL}")
    k.I(f"s_lshl_b32 s{sT2}, s{sSp}, 6")
    k.I(f"s_add_u32 s{sT}, s{sT}, s{sT2}")
    k.I(f"s_lshl_b32 s{sT}, s{sT}, 16")
    k.I(f"s_lshl_b32 s{sT2}, s{sCg}, 14")
    k.I(f"s_add_u32 s{sT}, s{sT}, s{sT2}")
    k.I(f"v_add_u32 v{vSt}, s{sT}, v{vAo}")
    k.I(f"v_lshrrev_b32 v{vT}, 4, v{vL}")
    k.I(f"v_lshlrev_b32 v{vT2}, 2, v{vT}")
    k.I(f"v_and_b32 v{vT3}, 15, v{vL}")
    k.I(f"v_xor_b32 v{vT3}, v{vT3}, v{vT2}")
    k.I(f"v_lshlrev_b32 v{vT3}, 4, v{vT3}")
    k.I(f"v_lshl_add_u32 v{vDma}, v{vT}, 10, v{vT3}")
    k.I(f"s_lshl_b32 s{sT}, s{sW}, 13")
    k.I(f"v_add_u32 v{vDma}, s{sT}, v{vDma}")
    k.I(f"s_lshl_b32 s{sSo}, s{sK0}, 10")
    k.I(f"s_lshl_b32 s{sT}, s{sCg}, 8")
    k.I(f"s_add_u32 s{sSo}, s{sSo}, s{sT}")
    k.I(f"s_lshl_b32 s{sWb}, s{sW}, 11")
    k.I(f"v_lshrrev_b32 v{vT}, 5, v{vL}")
    k.I(f"v_lshlrev_b32 v{vT}, 3, v{vT}")
    k.I(f"v_bfe_u32 v{vT2}, v{vL}, 2, 2")
    k.I(f"v_add_u32 v{vT}, v{vT}, v{vT2}")
    k.I(f"v_lshlrev_b32 v{vRd}, 8, v{vT}")
    k.I(f"v_lshl_add_u32 v{vRd}, v{vT2}, 6, v{vRd}")
    k.I(f"v_bfe_u32 v{vT}, v{vL}, 4, 1")
    k.I(f"v_lshl_add_u32 v{vRd}, v{vT}, 5, v{vRd}")
    k.I(f"v_and_b32 v{vT}, 3, v{vL}")
    k.I(f"v_lshl_add_u32 v{vRd}, v{vT}, 3, v{vRd}")
    for t in range(1, 4):
        k.I(f"v_xor_b32 v{vRd+t}, {64*t}, v{vRd}")

    def issue(st):
        slot = st % 4
        k.I(f"s_add_u32 s{sT}, s{sSo}, {st*65536}")
        k.I(f"s_add_u32 m0, s{sWb}, {slot*16384}")
        k.I(f"s_add_u32 s{sT2}, s{sT}, 4096")
        k.I(f"buffer_load_dwordx4 v{vDma}, s[{S_B}:{S_B+3}], s{sT} offen lds")
        k.I(f"s_add_u32 m0, s{sWb}, {slot*16384+1024}")
        k.I("s_nop 0")
        k.I(f"buffer_load_dwordx4 v{vDma}, s[{S_B}:{S_B+3}], s{sT2} offen lds")
        k.I(f"s_add_u32 s{sT3}, s{sAo}, {st*4096}")
        for ks in range(4):
            k.I(f"buffer_load_dwordx4 {v(vA+16*slot+4*ks,4)}, v{vAo}, s[{S_A}:{S_A+3}], s{sT3} offen offset:{ks*1024}")

    for st in range(3):
        issue(st)
    k.I("s_waitcnt vmcnt(12)")
    k.I("s_barrier")
    AHEAD = 5
    NTOT = NST * 16
    def rd(i):
        st, r = divmod(i, 16)
        ks, t = divmod(r, 4)
        fr = vFr + 4 * (i % NFR)
        off = (st % 4) * 16384 + ks * 4096
        k.I(f"ds_read_b64_tr_b16 {v(fr,2)}, v{vRd+t} offset:{off}")
        k.I(f"ds_read_b64_tr_b16 {v(fr+2,2)}, v{vRd+t} offset:{off+1024}")
    for i in range(AHEAD):
        rd(i)
    for i in range(NTOT):
        st, r = divmod(i, 16)
        ks, t = divmod(r, 4)
        fr = vFr + 4 * (i % NFR)
        left = min(AHEAD - 1, NTOT - 1 - i)
        k.I(f"s_waitcnt lgkmcnt({2*left})")
        acc = v(vAcc + 16 * t, 16)
        c = "0" if (st == 0 and ks == 0) else acc
        k.I(f"v_mfma_f32_32x32x16_bf16 {acc}, {v(fr,4)}, {v(vA+16*(st%4)+4*ks,4)}, {c}")
        if r == 7 and st + 1 < NST:
            k.I(f"s_waitcnt vmcnt({6 if st + 2 < NST else 0})")
            k.I("s_barrier")
        if r == 11 and st + 3 < NST:
            issue(st + 3)
        if i + AHEAD < NTOT:
            rd(i + AHEAD)
    k.nop(12)
    for t in range(4):
        k.I(f"s_mov_b32 s{sT}, {4096*t}")
        for j in range(4):
            k.I(f"buffer_store_dwordx4 {v(vAcc+16*t+4*j,4)}, v{vSt}, s[{S_P}:{S_P+3}], s{sT} offen offset:{1024*j}")
    k.L("L_outg_done")
    k.I("s_endpgm")
    k.meta = dict(vgpr=NV, agpr=0, sgpr=72)
    return k

def gen_final():
    k = Kern("final")
    k.L("final_kernel")
    k.I("s_cmp_ge_u32 s2, 1024")
    k.I("s_cbranch_scc1 L_final_done")
    k.I("s_load_dwordx2 s[4:5], s[0:1], 0")
    k.I("s_load_dwordx2 s[6:7], s[0:1], 72")
    k.I("s_load_dwordx2 s[20:21], s[0:1], 88")
    k.I("s_lshl_b32 s3, s2, 8")
    k.I("v_add_u32 v1, s3, v0")
    k.I("v_lshlrev_b32 v2, 4, v1")
    k.I("v_lshrrev_b32 v3, 12, v1")
    k.I("v_lshlrev_b32 v3, 15, v3")
    k.I("v_and_b32 v4, 31, v1")
    k.I("v_lshl_add_u32 v3, v4, 10, v3")
    k.I("v_bfe_u32 v4, v1, 8, 4")
    k.I("v_lshl_add_u32 v3, v4, 6, v3")
    k.I("v_bfe_u32 v4, v1, 6, 2")
    k.I("v_lshl_add_u32 v3, v4, 4, v3")
    k.I("v_bfe_u32 v4, v1, 5, 1")
    k.I("v_lshl_add_u32 v3, v4, 3, v3")
    k.I("s_waitcnt lgkmcnt(0)")
    srd(k, 8, 4, 5, 2 * MB)
    srd(k, 12, 6, 7, 2 * MB)
    srd(k, 16, 20, 21, 32 * MB, PART_OFF)
    for p in range(8):
        k.I(f"s_mov_b32 s22, {hex(p*4*MB)}")
        k.I(f"buffer_load_dwordx4 {v(8+4*p,4)}, v2, s[16:19], s22 offen")
    k.I("buffer_load_dwordx2 v[4:5], v3, s[8:11], 0 offen")
    k.I("s_waitcnt vmcnt(0)")
    k.I(f"s_mov_b32 s23, {f32bits(-1.4426950408889634)}")
    for e in range(4):
        for p in range(1, 6):
            k.I(f"v_add_f32 v{8+e}, v{8+e}, v{8+4*p+e}")
        k.I(f"v_add_f32 v{32+e}, v{32+e}, v{36+e}")
    for e in range(4):
        round_bf16(k, 8 + e, 8 + e)
        round_bf16(k, 32 + e, 32 + e)
    for e in range(4):
        k.I(f"v_mul_f32 v{40+e}, s23, v{32+e}")
    for e in range(4):
        k.I(f"v_exp_f32 v{40+e}, v{40+e}")
    k.I("s_nop 0")
    for e in range(4):
        k.I(f"v_add_f32 v{40+e}, 1.0, v{40+e}")
    for e in range(4):
        k.I(f"v_rcp_f32 v{40+e}, v{40+e}")
    k.I("s_nop 0")
    for e in range(4):
        k.I(f"v_mul_f32 v{40+e}, v{32+e}, v{40+e}")
    for e in range(4):
        round_bf16(k, 40 + e, 40 + e)
    for e in range(4):
        k.I(f"v_mul_f32 v{40+e}, v{8+e}, v{40+e}")
    for e in range(4):
        round_bf16(k, 40 + e, 40 + e)
    k.I("v_lshlrev_b32 v44, 16, v4")
    k.I("v_and_b32 v45, 0xffff0000, v4")
    k.I("v_lshlrev_b32 v46, 16, v5")
    k.I("v_and_b32 v47, 0xffff0000, v5")
    for e in range(4):
        k.I(f"v_add_f32 v{40+e}, v{44+e}, v{40+e}")
    k.I("v_cvt_pk_bf16_f32 v4, v40, v41")
    k.I("v_cvt_pk_bf16_f32 v5, v42, v43")
    k.I("buffer_store_dwordx2 v[4:5], v3, s[12:15], 0 offen")
    k.L("L_final_done")
    k.I("s_endpgm")
    k.meta = dict(vgpr=48, agpr=0, sgpr=32)
    return k
```

```python
import sys, os
sys.path.insert(0, os.path.dirname(__file__))
from asmlib import *
import k01

NAME = "recurrent_scan__compressed_kv_cla__dense_activation_relu__prompt"
OUT = f"cdna_kernels/{NAME}.s"

def build(kernels, out=OUT):
    hdr = []
    for k, label, grid, block, lds in kernels:
        hdr.append(f"; @launch kernel={label} grid=({grid},1,1) block=({block},1,1) lds={lds}")
    body = ['.amdgcn_target "amdgcn-amd-amdhsa--gfx950"', ".text"]
    seen = set()
    for k, label, grid, block, lds in kernels:
        if label in seen: continue
        seen.add(label)
        body.append(f".globl {label}")
        body.append(".p2align 8")
        body.append(f".type {label},@function")
        t = k.text()
        if os.environ.get("RT"):
            kidx = len(seen) - 1
            st = "\n".join(["  s_load_dwordx2 s[84:85], s[0:1], 88", "  s_memrealtime s[88:89]", "  s_memtime s[90:91]", "  s_waitcnt lgkmcnt(0)",
                f"  s_add_u32 s84, s84, {hex(160*1024*1024 + kidx*65536)}", "  s_addc_u32 s85, s85, 0",
                "  s_mov_b32 s86, 65536", "  s_mov_b32 s87, 0x00020000"])
            en = "\n".join(["  s_waitcnt vmcnt(0) lgkmcnt(0)", "  s_memrealtime s[92:93]", "  s_memtime s[94:95]", "  s_waitcnt lgkmcnt(0)",
                "  v_mov_b32 v4, s88", "  v_mov_b32 v5, s92", "  v_mov_b32 v6, s90", "  v_mov_b32 v7, s94", "  v_lshlrev_b32 v2, 16, v0", "  s_lshl_b32 s96, s2, 4",
                "  buffer_store_dwordx4 v[4:7], v2, s[84:87], s96 offen", "  s_endpgm"])
            t = t.replace(label + ":", label + ":\n" + st, 1)
            t = t.replace("  s_endpgm", en, 1)
            k.meta["sgpr"] = 100
        probs = check_hazards(t)
        for p in probs:
            print(f"HAZARD[{label}] {p}")
        body.append(t)
    body.append('.section .rodata,"a"')
    seen = set()
    for k, label, grid, block, lds in kernels:
        if label in seen: continue
        seen.add(label)
        m = k.meta
        acc = (m["vgpr"] + 3) // 4 * 4
        nfv = acc + m["agpr"] if m["agpr"] else m["vgpr"]
        body.append(".p2align 6")
        body.append(f".amdhsa_kernel {label}")
        body.append(f"  .amdhsa_next_free_vgpr {nfv}")
        body.append(f"  .amdhsa_next_free_sgpr {m['sgpr']}")
        body.append(f"  .amdhsa_accum_offset {acc}")
        body.append("  .amdhsa_group_segment_fixed_size 0")
        body.append("  .amdhsa_kernarg_size 96")
        body.append("  .amdhsa_user_sgpr_count 2")
        body.append("  .amdhsa_user_sgpr_kernarg_segment_ptr 1")
        body.append("  .amdhsa_system_sgpr_workgroup_id_x 1")
        body.append(".end_amdhsa_kernel")
    open(out, "w").write("\n".join(hdr + body) + "\n")

def main():
    ks = []
    ks.append((k01.gen_ln(), "ln_kernel", 1024, 256, 0))
    ks.append((k01.gen_proj(), "proj_kernel", 256, 512, 131072))
    try:
        if os.environ.get("ATT", "D") == "E":
            import k2
            ks.append((k2.gen_attn(), "attn_kernel", 256, 256, 163840))
        else:
            import k2d
            ks.append((k2d.gen_attn(), "attn_kernel", 256, 512, 163840))
    except ImportError:
        pass
    try:
        import k34
        ks.append((k34.gen_outgemm(), "outg_kernel", 256, 512, 65536))
        ks.append((k34.gen_final(), "final_kernel", 1024, 256, 0))
    except ImportError:
        pass
    build(ks, os.environ.get('GEN_OUT', OUT))

if __name__ == "__main__":
    main()
```

```python
from asmlib import *
from k01 import *
from k2 import schedule, NEGBIG, FLOOR0, THR
import os
FL = set(os.environ.get("ATT_FLAGS", "").split(","))
BUD = int(os.environ.get("ATT_BUD", "24"))
BUD2 = int(os.environ.get("ATT_BUD2", "32"))

def gen_attn():
    k = Kern("attn")
    S_K = 8; S_V = 12; S_Q = 16; S_C = 20
    sW = 24; sG_ = 25; sCc = 26; sH = 27
    sT = 28; sTn = 29
    sOffK = 30; sCntK = 31; sOffV = 32; sCntV = 33
    sSB = 34
    sA = 37; sB = 38
    sCnt = 42; sTileIdx = 43; sMo = 44
    sMk = 48
    vL = 1; vT0 = 2; vT1 = 3; vT2 = 4; vT3 = 5
    vKrd = 6; vVrd = 7; vDma = 8; vL16 = 9
    vLs = 10; vMx = 21; vThr = 12; vFloor = 13
    vDq0 = 14; vDq = 15; vNB = 16; vQoff = 17; vCoff = 18; vMst = 19; vMo = 20
    vTmp = 22
    vR2 = 30
    SB = [32, 48]
    vNegm = 64
    vP = 80
    vKf = 88; vVf = 120
    NV = 152
    vStamp = 152
    if "stamp2" in FL: NV = 160
    aO = 0; aQ = 64
    KRING = 0; VRING = 65536; MREG = 131072

    k.L("attn_kernel")
    k.I("s_cmp_ge_u32 s2, 256")
    k.I("s_cbranch_scc1 L_attn_done")
    k.I("s_load_dwordx2 s[60:61], s[0:1], 88")
    k.I("s_and_b32 s62, s2, 7")
    k.I("s_lshr_b32 s63, s2, 3")
    k.I(f"s_lshl_b32 s{sH}, s62, 2")
    k.I("s_lshr_b32 s62, s63, 3")
    k.I(f"s_add_u32 s{sH}, s{sH}, s62")
    k.I("s_and_b32 s63, s63, 7")
    k.I(f"s_sub_u32 s{sT}, 15, s63")
    k.I(f"s_mov_b32 s{sTn}, s63")
    k.I(f"v_and_b32 v{vL}, 63, v0")
    k.I(f"v_lshrrev_b32 v{vT0}, 6, v0")
    k.I(f"v_lshlrev_b32 v{vL16}, 4, v{vL}")
    k.I(f"v_readfirstlane_b32 s{sW}, v{vT0}")
    k.I("s_nop 3")
    k.I(f"s_and_b32 s{sG_}, s{sW}, 3")
    k.I(f"s_lshr_b32 s{sCc}, s{sW}, 2")
    k.I(f"s_lshl_b32 s{sCntK}, s{sT}, 1")
    k.I(f"s_add_u32 s{sCntK}, s{sCntK}, 4")
    k.I(f"s_add_u32 s{sCntV}, s{sCntK}, 2")
    k.I(f"s_mov_b32 s{sOffK}, {hex((1<<32)-16384)}")
    k.I(f"s_mov_b32 s{sOffV}, {hex((1<<32)-3*16384)}")
    k.I(f"s_lshl_b32 s{sSB}, s{sW}, 11")
    k.I("s_waitcnt lgkmcnt(0)")
    k.I(f"s_lshl_b32 s{sA}, s{sH}, 19")
    for D, off in ((S_K, KW_OFF), (S_V, VT_OFF), (S_Q, QW_OFF)):
        k.I(f"s_add_u32 s{sB}, s{sA}, {hex(off)}")
        k.I(f"s_add_u32 s{D}, s60, s{sB}")
        k.I(f"s_addc_u32 s{D+1}, s61, 0")
        k.I(f"s_mov_b32 s{D+2}, {hex(512*1024)}")
        k.I(f"s_mov_b32 s{D+3}, 0x00020000")
    srd(k, S_C, 60, 61, 16 * MB, CTX_OFF)
    k.I(f"v_and_b32 v{vT0}, 31, v{vL}")
    k.I(f"v_lshrrev_b32 v{vT1}, 5, v{vL}")
    k.I(f"s_lshl_b32 s{sA}, s{sCc}, 13")
    k.I(f"v_add_u32 v{vKrd}, s{sA}, v{vL16}")
    k.I(f"v_add_u32 v{vVrd}, {VRING}, v{vKrd}")
    k.I(f"v_add_u32 v{vDma}, s{sSB}, v{vL16}")
    k.I(f"s_sub_u32 s{sA}, s{sG_}, s{sCc}")
    k.I(f"s_lshl_b32 s{sA}, s{sA}, 5")
    k.I(f"v_lshlrev_b32 v{vT2}, 2, v{vT1}")
    k.I(f"v_sub_u32 v{vT2}, v{vT0}, v{vT2}")
    k.I(f"v_add_u32 v{vDq0}, s{sA}, v{vT2}")
    k.I(f"v_mov_b32 v{vNB}, {NEGBIG}")
    k.I(f"s_lshl_b32 s{sA}, s{sG_}, 18")
    k.I(f"s_lshl_b32 s{sB}, s{sH}, 13")
    k.I(f"s_add_u32 s{sA}, s{sA}, s{sB}")
    k.I(f"s_lshl_b32 s{sB}, s{sCc}, 12")
    k.I(f"s_add_u32 s{sA}, s{sA}, s{sB}")
    k.I(f"v_add_u32 v{vCoff}, s{sA}, v{vL16}")
    k.I(f"s_lshl_b32 s{sA}, s{sG_}, 13")
    k.I(f"v_add_u32 v{vQoff}, s{sA}, v{vL16}")
    k.I(f"s_lshl_b32 s{sA}, s{sCc}, 16")
    k.I(f"s_lshl_b32 s{sB}, s{sG_}, 12")
    k.I(f"s_add_u32 s{sA}, s{sA}, s{sB}")
    k.I(f"v_add_u32 v{vR2}, s{sA}, v{vL16}")
    k.I(f"s_xor_b32 s{sA}, s{sA}, {VRING}")
    k.I(f"v_lshlrev_b32 v{vMst}, 3, v{vT0}")
    k.I(f"v_add_u32 v{vMst}, s{sA}, v{vMst}")
    k.I(f"s_lshl_b32 s{sA}, s{sW}, 12")
    k.I(f"s_add_u32 s{sA}, s{sA}, {MREG}")
    k.I(f"v_add_u32 v{vMo}, s{sA}, v{vL16}")

    def stamp(i):
        if "stamp2" not in FL: return
        k.I("s_memtime s[80:81]")
        k.I("s_waitcnt lgkmcnt(0)")
        k.I(f"s_lshl_b32 s82, s{sTileIdx}, 3")
        k.I(f"s_add_u32 s82, s82, {i}")
        k.I(f"v_mov_b32 v{vStamp+1}, s80")
        k.I(f"v_cmp_eq_u32 vcc, s82, v{vL}")
        k.I("s_nop 1")
        k.I(f"v_cndmask_b32 v{vStamp}, v{vStamp}, v{vStamp+1}, vcc")

    def qloads(sTile):
        k.I(f"s_lshl_b32 s{sA}, s{sTile}, 15")
        for i in range(8):
            if i == 4:
                k.I(f"s_add_u32 s{sA}, s{sA}, 4096")
            k.I(f"buffer_load_dwordx4 {a(aQ+i*4,4)}, v{vQoff}, s[{S_Q}:{S_Q+3}], s{sA} offen offset:{(i%4)*1024}")

    def dma_items(slot_odd):
        it = []
        S = lambda t: it.append((t, 4))
        S(f"s_add_u32 s{sOffK}, s{sOffK}, 16384")
        S(f"s_sub_u32 s{sCntK}, s{sCntK}, 1")
        S(f"s_cselect_b32 s{sOffK}, 0, s{sOffK}")
        S(f"s_add_u32 m0, s{sSB}, {slot_odd*16384}")
        S(f"s_add_u32 s{sOffV}, s{sOffV}, 16384")
        for i in range(2):
            it.append((f"buffer_load_dwordx4 v{vDma}, s[{S_K}:{S_K+3}], s{sOffK} offen offset:{1024*i} lds", 8))
        S(f"s_sub_u32 s{sCntV}, s{sCntV}, 1")
        S(f"s_cselect_b32 s{sOffV}, 0, s{sOffV}")
        S(f"s_add_u32 m0, s{sSB}, {slot_odd*16384+VRING}")
        if slot_odd:
            S(f"s_xor_b32 s{sSB}, s{sSB}, 0x8000")
        else:
            S("s_nop 0")
        for i in range(2):
            it.append((f"buffer_load_dwordx4 v{vDma}, s[{S_V}:{S_V+3}], s{sOffV} offen offset:{1024*i} lds", 8))
        return it

    def head(vm=8):
        k.I(f"s_waitcnt vmcnt({vm}) lgkmcnt(0)")
        k.I("s_barrier")

    def kreads(odd):
        return [(f"ds_read_b128 {v(vKf+4*ks,4)}, v{vKrd} offset:{16384*odd+1024*ks}", 4) for ks in range(8)]
    def vreads(odd):
        return [(f"ds_read_b128 {v(vVf+4*(dt*2+kk),4)}, v{vVrd} offset:{16384*odd+1024*(dt*2+kk)}", 4) for kk in range(2) for dt in range(4)]
    def toggle():
        for r in [vKrd, vVrd]:
            k.I(f"v_xor_b32 v{r}, 0x8000, v{r}")

    def qk_mfmas(buf):
        out = []
        for ks in range(8):
            d = v(SB[buf], 16)
            c = v(vNegm, 16) if ks == 0 else d
            out.append(f"v_mfma_f32_32x32x16_bf16 {d}, {v(vKf+4*ks,4)}, {a(aQ+ks*4,4)}, {c}")
        return out
    def pv_mfmas(kk):
        out = []
        for dt in range(4):
            d = a(aO + dt * 16, 16)
            out.append(f"v_mfma_f32_32x32x16_bf16 {d}, {v(vVf+4*(dt*2+kk),4)}, {v(vP+4*kk,4)}, {d}")
        return out

    def exp_items(buf, kk):
        it = []
        b = SB[buf] + 8 * kk
        for x in range(4):
            r0, r1 = b + 2 * x, b + 2 * x + 1
            if "e_indep" in FL:
                it.append((f"v_exp_f32 v{vTmp+x}, v{vTmp+4+x}", 8))
                it.append((f"v_exp_f32 v{vTmp+x}, v{vTmp+4+x}", 8))
                continue
            if "e_noexp" in FL: continue
            it.append((f"v_exp_f32 v{r0}, v{r0}", 8))
            it.append((f"v_exp_f32 v{r1}, v{r1}", 8))
        for x in range(4):
            r0, r1 = b + 2 * x, b + 2 * x + 1
            if "e_nocvt" not in FL: it.append((f"v_cvt_pk_bf16_f32 v{vP+4*kk+x}, v{r0}, v{r1}", 4))
            if "e_noadd" in FL: pass
            elif "e_pk" in FL: it.append((f"v_pk_add_f32 {v(vLs,2)}, {v(vLs,2)}, {v(r0,2)}", 4))
            elif "e_dot" in FL: it.append((f"v_dot2_f32_bf16 v{vLs+(x&1)}, v{vP+4*kk+x}, v{vFloor}, v{vLs+(x&1)}", 4))
            else:
                it.append((f"v_add_f32 v{vLs}, v{vLs}, v{r0}", 4))
                it.append((f"v_add_f32 v{vLs+1}, v{vLs+1}, v{r1}", 4))
        return it

    def mask_items(buf, moff_sgpr=None, moff_imm=0):
        it = []
        if moff_sgpr is not None:
            it.append((f"v_add_u32 v{vDq}, s{moff_sgpr}, v{vDq0}", 4))
        else:
            it.append((f"v_add_u32 v{vDq}, {moff_imm}, v{vDq0}", 4))
        def cmp_(r):
            return (f"v_cmp_ge_i32 s[{sMk+2*(r%4)}:{sMk+2*(r%4)+1}], v{vDq}, {8*(r//4)+r%4}", 4)
        def cnd(r):
            reg = SB[buf] + r
            return (f"v_cndmask_b32 v{reg}, v{vNB}, v{reg}, s[{sMk+2*(r%4)}:{sMk+2*(r%4)+1}]", 4)
        for i in range(3): it.append(cmp_(i))
        for i in range(16):
            if i + 3 < 16: it.append(cmp_(i + 3))
            else: it.append(("s_nop 0", 4))
            it.append(cnd(i))
        return it

    def max_items(buf):
        it = []
        b = SB[buf]
        m = vMx
        it.append((f"v_max3_f32 v{m}, v{b}, v{b+1}, v{b+2}", 4))
        for x in range(6):
            it.append((f"v_max3_f32 v{m}, v{m}, v{b+3+2*x}, v{b+4+2*x}", 4))
        it.append((f"v_max_f32 v{m}, v{m}, v{b+15}", 4))
        it.append((f"v_cmp_ge_f32 vcc, v{m}, v{vThr}", 4))
        return it

    def slow_path(buf, lab_back):
        k.nop(12)
        m = vMx
        k.I(f"v_mov_b32 v{vT0}, v{m}")
        k.I("s_nop 1")
        k.I(f"v_permlane32_swap_b32 v{vT0}, v{m}")
        k.I(f"v_max_f32 v{m}, v{m}, v{vT0}")
        k.I(f"v_max_f32 v{m}, 0, v{m}")
        k.I(f"v_exp_f32 v{vT1}, -v{m}")
        for r in range(16):
            k.I(f"v_sub_f32 v{SB[buf]+r}, v{SB[buf]+r}, v{m}")
        for r in range(16):
            k.I(f"v_sub_f32 v{vNegm+r}, v{vNegm+r}, v{m}")
        k.I(f"v_mul_f32 v{vLs}, v{vLs}, v{vT1}")
        k.I(f"v_mul_f32 v{vLs+1}, v{vLs+1}, v{vT1}")
        for r in range(64):
            ar = aO + r
            t = vTmp + (r % 8)
            k.I(f"v_accvgpr_read_b32 v{t}, a{ar}")
            k.I(f"v_mul_f32 v{t}, v{t}, v{vT1}")
            k.I(f"v_accvgpr_write_b32 a{ar}, v{t}")
        k.I("s_nop 1")
        k.I(f"s_branch {lab_back}")

    slow_blocks = []
    def check_branch(buf):
        ls = k.newlabel("slow"); lb = k.newlabel("back")
        k.I(f"s_cbranch_vccnz {ls}")
        k.L(lb)
        slow_blocks.append((buf, ls, lb))

    def E(items, e):
        return [(t, c, e) for (t, c) in items]

    def body(odd, mask_next=None, last=False):
        cur = odd; nxt = 1 - odd
        head()
        pv0 = pv_mfmas(0); pv1 = pv_mfmas(1)
        pv0[0] = ["s_waitcnt lgkmcnt(0)", pv0[0]]
        e0 = exp_items(cur, 0); e1 = exp_items(cur, 1)
        dm = dma_items(1 - odd)
        if last:
            for t, c in vreads(odd): k.I(t)
            qloads(sTn)
            for t, c in e0: k.I(t)
            k.I("s_nop 1")
            schedule(k, pv0, [dict(items=E(e1, 0))], BUD)
            k.I("s_nop 1")
            for m in pv1: k.I(m)
            if odd: toggle()
            return
        rds = E(vreads(odd), 0) + [(x, c, i) for i, (x, c) in enumerate(kreads(odd))]
        st_r = dict(items=rds, maxper=2)
        st_d = dict(items=E(dm, 0), maxper=5)
        if "nodma" in FL: st_d = dict(items=[])
        if "noexp" in FL: e0 = []; e1 = []
        if "nord" in FL: st_r = dict(items=[])
        pv0[0] = ["s_waitcnt lgkmcnt(12)", pv0[0][1]]
        pv1[0] = ["s_waitcnt lgkmcnt(8)", pv1[0]]
        schedule(k, qk_mfmas(nxt), [st_r, dict(items=E(e0, 0))], BUD)
        k.I("s_nop 1")
        schedule(k, pv0, [dict(items=E(e1, 0))], BUD)
        k.I("s_nop 1")
        mi = []
        if mask_next is not None:
            mi += mask_items(nxt, moff_imm=mask_next)
        mi += max_items(nxt)
        schedule(k, pv1, [dict(items=E(mi, 0)), st_d], BUD2)
        if odd: toggle()
        check_branch(nxt)

    if "stamp2" in FL: k.I(f"v_mov_b32 v{vStamp}, 0")
    k.I(f"s_mov_b32 s{sTileIdx}, 0")
    qloads(sT)
    for st in range(2):
        for t, c in dma_items(st & 1): k.I(t)
    k.I(f"v_mov_b32 v{vThr}, {THR}")
    k.I(f"v_mov_b32 v{vFloor}, 0x3f803f80")

    if "prio" in FL:
        k.I(f"s_cmp_eq_u32 s{sCc}, 0")
        k.I("s_cbranch_scc1 L_attn_noprio")
        k.I("s_setprio 1")
        k.L("L_attn_noprio")
    k.L("L_attn_tile")
    stamp(0)
    k.I(f"v_mov_b32 v{vLs}, 0")
    k.I(f"v_mov_b32 v{vLs+1}, 0")
    head(vm=4)
    for t, c in kreads(0): k.I(t)
    for t, c in dma_items(0): k.I(t)
    for t, c in dma_items(1): k.I(t)
    stamp(1)
    head(vm=8)
    qk0 = qk_mfmas(0)
    qk0[0] = qk0[0].replace(v(vNegm, 16), "0")
    zs = [(f"v_accvgpr_write_b32 a{aO+r}, 0", 4, 0) for r in range(64)]
    schedule(k, qk0, [dict(items=[(x, c, i) for i, (x, c) in enumerate(kreads(1))], maxper=1), dict(items=zs)], 28)
    for t, c in dma_items(0): k.I(t)
    k.I(f"s_cmp_lg_u32 s{sT}, 0")
    k.I("s_cbranch_scc1 L_attn_nomask0")
    for t, c in mask_items(0, moff_imm=0): k.I(t)
    k.L("L_attn_nomask0")
    for t, c in max_items(0)[:-1]: k.I(t)
    toggle()
    k.I(f"v_mov_b32 v{vT0}, v{vMx}")
    k.I("s_nop 1")
    k.I(f"v_permlane32_swap_b32 v{vT0}, v{vMx}")
    k.I(f"v_max3_f32 v{vMx}, v{vMx}, v{vT0}, {FLOOR0}" if False else f"v_max_f32 v{vMx}, v{vMx}, v{vT0}")
    k.I(f"v_max_f32 v{vMx}, {FLOOR0}, v{vMx}")
    for r in range(16):
        k.I(f"v_sub_f32 v{SB[0]+r}, v{SB[0]+r}, v{vMx}")
    for r in range(16):
        k.I(f"v_sub_f32 v{vNegm+r}, 0, v{vMx}")
    stamp(2)
    k.I(f"s_cmp_eq_u32 s{sT}, 0")
    k.I("s_cbranch_scc1 L_attn_tail")
    k.I(f"s_sub_u32 s{sCnt}, s{sT}, 1")
    if "al0" in FL: k.I(".p2align 3")
    if "al4" in FL:
        k.I(".p2align 3"); k.I("s_nop 0")
    if "al64" in FL: k.I(".p2align 6")
    k.L("L_attn_loop")
    k.I(f"s_cmp_eq_u32 s{sCnt}, 0")
    k.I("s_cbranch_scc1 L_attn_pretail")
    body(0); body(1)
    k.I(f"s_sub_u32 s{sCnt}, s{sCnt}, 1")
    k.I("s_branch L_attn_loop")
    k.L("L_attn_pretail")
    stamp(3)
    body(0); body(1, mask_next=0)
    k.L("L_attn_tail")
    stamp(4)
    body(0, mask_next=-64); body(1, last=True)

    stamp(5)
    k.I(f"v_add_f32 v{vLs}, v{vLs}, v{vLs+1}")
    k.I(f"v_sub_f32 v{vTmp}, 0, v{vNegm}")
    k.I(f"v_mov_b32 v{vT0}, v{vLs}")
    k.I("s_nop 1")
    k.I(f"v_permlane32_swap_b32 v{vT0}, v{vLs}")
    k.I(f"v_add_f32 v{vTmp+1}, v{vLs}, v{vT0}")
    k.I(f"v_and_b32 v{vT3}, 0x8000, v{vKrd}")
    k.I(f"v_xor_b32 v{vT3}, 0x8000, v{vT3}")
    k.I(f"v_add_u32 v{vT1}, v{vT3}, v{vMst}")
    k.I(f"ds_write_b64 v{vT1}, {v(vTmp,2)}")
    k.I(f"v_xor_b32 v{vT1}, {VRING}, v{vT1}")
    k.I(f"v_add_u32 v{vT3}, v{vT3}, v{vR2}")
    k.I(f"v_xor_b32 v{vT2}, 16384, v{vMo}")
    k.I(f"s_lshl_b32 s{sA}, s{sT}, 20")
    k.I(f"s_cmp_eq_u32 s{sCc}, 1")
    k.I("s_cbranch_scc1 L_attn_merge1")
    for c in range(2):
        if c == 1:
            k.L("L_attn_merge1")
        keep = (0, 1) if c == 0 else (2, 3)
        send = (2, 3) if c == 0 else (0, 1)
        R = SB[0]
        PK = vKf
        k.nop(4)
        for q4 in range(4):
            k.I(f"ds_write_b128 v{vMo}, {a(aO+send[0]*16+4*q4,4)} offset:{q4*1024}")
        k.I("s_waitcnt lgkmcnt(0)")
        k.I("s_barrier")
        k.I(f"ds_read_b64 {v(vTmp+2,2)}, v{vT1}")
        for i in range(4):
            k.I(f"ds_read_b128 {v(R+4*i,4)}, v{vT2} offset:{i*1024}")
        k.I("s_waitcnt lgkmcnt(4)")
        for q4 in range(4):
            k.I(f"ds_write_b128 v{vT3}, {a(aO+send[1]*16+4*q4,4)} offset:{q4*1024}")
        mo, lo, mp, lp = vTmp, vTmp + 1, vTmp + 2, vTmp + 3
        k.I(f"v_max_f32 v{vT0}, v{mo}, v{mp}")
        k.I(f"v_sub_f32 v{mo}, v{mo}, v{vT0}")
        k.I(f"v_sub_f32 v{mp}, v{mp}, v{vT0}")
        k.I(f"v_exp_f32 v{mo}, v{mo}")
        k.I(f"v_exp_f32 v{mp}, v{mp}")
        k.I(f"v_xor_b32 v{vT3}, {VRING}, v{vT3}")
        k.I(f"v_mul_f32 v{lo}, v{lo}, v{mo}")
        k.I(f"v_fma_f32 v{lo}, v{lp}, v{mp}, v{lo}")
        k.I(f"v_rcp_f32 v{lo}, v{lo}")
        k.I("s_nop 0")
        k.I(f"v_mul_f32 v{vMx}, v{mo}, v{lo}")
        k.I(f"v_mul_f32 v{vDq}, v{mp}, v{lo}")
        k.I("s_waitcnt lgkmcnt(0)")
        k.I("s_barrier")
        for i in range(4):
            k.I(f"ds_read_b128 {v(R+16+4*i,4)}, v{vT3} offset:{i*1024}")
        for ti, dt in enumerate(keep):
            if ti == 1: k.I("s_waitcnt lgkmcnt(0)")
            for r in range(16):
                t = vTmp + 4 + (r % 2)
                k.I(f"v_accvgpr_read_b32 v{t}, a{aO+dt*16+r}")
                k.I(f"v_mul_f32 v{t}, v{t}, v{vMx}")
                k.I(f"v_fma_f32 v{t}, v{R+16*ti+r}, v{vDq}, v{t}")
                if r % 2 == 1:
                    k.I(f"v_cvt_pk_bf16_f32 v{PK+8*ti+r//2}, v{vTmp+4}, v{vTmp+5}")
        k.I("s_nop 1")
        for ti, dt in enumerate(keep):
            for jp in range(2):
                b = PK + 8 * ti + 4 * jp
                k.I(f"v_permlane32_swap_b32 v{b}, v{b+2}")
                k.I(f"v_permlane32_swap_b32 v{b+1}, v{b+3}")
        for ti, dt in enumerate(keep):
            for jp in range(2):
                b = PK + 8 * ti + 4 * jp
                k.I(f"buffer_store_dwordx4 {v(b,4)}, v{vCoff}, s[{S_C}:{S_C+3}], s{sA} offen offset:{2048*ti+1024*jp}")
        k.I("s_nop 1")
        if c == 0:
            k.I("s_branch L_attn_merged")
    k.L("L_attn_merged")
    stamp(6)
    k.I(f"s_cmp_eq_u32 s{sTileIdx}, 1")
    k.I("s_cbranch_scc1 L_attn_fin")
    k.I(f"s_mov_b32 s{sTileIdx}, 1")
    k.I(f"s_mov_b32 s{sT}, s{sTn}")
    k.I("s_branch L_attn_tile")
    k.L("L_attn_fin")
    if "stamp2" in FL:
        k.I("s_cmp_lg_u32 s2, 0")
        k.I("s_cbranch_scc1 L_attn_done")
        k.I("s_load_dwordx2 s[70:71], s[0:1], 80")
        k.I("s_waitcnt lgkmcnt(0)")
        k.I("s_mov_b32 s76, s70")
        k.I("s_mov_b32 s77, s71")
        k.I("s_mov_b32 s78, 64")
        k.I("s_mov_b32 s79, 0x00020000")
        k.I("v_lshlrev_b32 v4, 2, v0")
        k.I(f"buffer_store_dword v{vStamp}, v4, s[76:79], 0 offen")
    k.L("L_attn_done")
    k.I("s_endpgm")
    for buf, ls, lb in slow_blocks:
        k.L(ls)
        slow_path(buf, lb)
    k.meta = dict(vgpr=NV, agpr=96, sgpr=84)
    return k
```

```python
from asmlib import *

MB = 1 << 20
XN_OFF = 0
CKF_OFF = 2 * MB
QW_OFF = 16 * MB
KW_OFF = 32 * MB
VT_OFF = 48 * MB
H_OFF = 64 * MB
CTX_OFF = 80 * MB
PART_OFF = 96 * MB
WS_SIZE = 128 * MB
BIGOFF = 0x7FFFFFF0

QSCALE = 1.4426950408889634 / (128.0 ** 0.5)

import struct
def f32bits(x):
    return "0x%08x" % struct.unpack("<I", struct.pack("<f", x))[0]

def srd(k, d, base_lo, base_hi, size, add=0):
    if add:
        k.I(f"s_add_u32 s{d}, s{base_lo}, {hex(add)}")
        k.I(f"s_addc_u32 s{d+1}, s{base_hi}, 0")
    else:
        k.I(f"s_mov_b32 s{d}, s{base_lo}")
        k.I(f"s_mov_b32 s{d+1}, s{base_hi}")
    k.I(f"s_mov_b32 s{d+2}, {hex(size)}")
    k.I(f"s_mov_b32 s{d+3}, 0x00020000")

def wave_allreduce_add(k, vx, vt):
    for m in (0x041F, 0x081F, 0x101F, 0x201F, 0x401F):
        k.I(f"ds_swizzle_b32 v{vt}, v{vx} offset:{hex(m)}")
        k.I("s_waitcnt lgkmcnt(0)")
        k.I(f"v_add_f32 v{vx}, v{vx}, v{vt}")
    k.I(f"v_mov_b32 v{vt}, v{vx}")
    k.I("s_nop 1")
    k.I(f"v_permlane32_swap_b32 v{vt}, v{vx}")
    k.I(f"v_add_f32 v{vx}, v{vx}, v{vt}")

def round_bf16(k, vd, vs):
    k.I(f"v_cvt_pk_bf16_f32 v{vd}, v{vs}, v{vs}")
    k.I(f"v_and_b32 v{vd}, 0xffff0000, v{vd}")


import os
PREF = os.environ.get("PREF", "1") == "1"
def gen_ln():
    k = Kern("ln")
    k.L("ln_kernel")
    k.I("s_cmp_ge_u32 s2, 1024")
    k.I("s_cbranch_scc1 L_ln_done")
    k.I("s_load_dwordx4 s[4:7], s[0:1], 0")
    k.I("s_load_dwordx2 s[16:17], s[0:1], 88")
    if PREF:
        k.I("s_load_dwordx8 s[24:31], s[0:1], 16")
        k.I("s_load_dwordx4 s[32:35], s[0:1], 56")
    k.I("v_lshrrev_b32 v1, 6, v0")
    k.I("v_and_b32 v2, 63, v0")
    k.I("s_and_b32 s3, s2, 511")
    k.I("s_lshl_b32 s3, s3, 2")
    k.I("v_add_u32 v1, s3, v1")
    k.I("v_lshlrev_b32 v3, 10, v1")
    k.I("v_lshl_add_u32 v3, v2, 4, v3")
    k.I("v_lshrrev_b32 v16, 5, v1")
    k.I("v_lshlrev_b32 v16, 15, v16")
    k.I("v_lshrrev_b32 v17, 1, v2")
    k.I("v_lshl_add_u32 v16, v17, 10, v16")
    k.I("v_and_b32 v17, 1, v2")
    k.I("v_lshl_add_u32 v16, v17, 9, v16")
    k.I("v_and_b32 v17, 31, v1")
    k.I("v_lshl_add_u32 v1, v17, 4, v16")
    k.I("s_waitcnt lgkmcnt(0)")
    k.I("s_cmp_ge_u32 s2, 512")
    k.I("s_cselect_b32 s8, s6, s4")
    k.I("s_cselect_b32 s9, s7, s5")
    k.I(f"s_mov_b32 s10, {hex(2*MB)}")
    k.I("s_mov_b32 s11, 0x00020000")
    k.I(f"s_cselect_b32 s18, {hex(CKF_OFF)}, {hex(XN_OFF)}")
    k.I("s_add_u32 s12, s16, s18")
    k.I("s_addc_u32 s13, s17, 0")
    k.I(f"s_mov_b32 s14, {hex(2*MB)}")
    k.I("s_mov_b32 s15, 0x00020000")
    k.I("buffer_load_dwordx4 v[4:7], v3, s[8:11], 0 offen")
    if PREF:
        k.I("v_lshlrev_b32 v22, 4, v0")
        k.I("s_lshl_b32 s19, s2, 12")
        k.I("s_mov_b32 s39, 0x00020000")
        for n, (b, sz) in enumerate(((24, 4*MB), (26, 4*MB), (28, 4*MB), (32, 512*1376*2), (30, 4*MB), (34, 512*1376*2))):
            k.I(f"s_mov_b32 s36, s{b}")
            k.I(f"s_mov_b32 s37, s{b+1}")
            k.I(f"s_mov_b32 s38, {hex(sz)}")
            k.I(f"buffer_load_dwordx4 v[{24+4*n}:{27+4*n}], v22, s[36:39], s19 offen")
    k.I("s_cmp_ge_u32 s2, 512")
    k.I(f"s_waitcnt vmcnt({6 if PREF else 0})")
    k.I("s_cbranch_scc1 L_ln_store")
    for i in range(4):
        k.I(f"v_lshlrev_b32 v{8+2*i}, 16, v{4+i}")
        k.I(f"v_and_b32 v{9+2*i}, 0xffff0000, v{4+i}")
    k.I("v_add_f32 v16, v8, v9")
    k.I("v_add_f32 v17, v10, v11")
    k.I("v_add_f32 v18, v12, v13")
    k.I("v_add_f32 v19, v14, v15")
    k.I("v_add_f32 v16, v16, v17")
    k.I("v_add_f32 v18, v18, v19")
    k.I("v_add_f32 v16, v16, v18")
    wave_allreduce_add(k, 16, 17)
    k.I(f"v_mul_f32 v16, {f32bits(1.0/512)}, v16")
    k.I("v_mov_b32 v18, 0")
    for i in range(8):
        k.I(f"v_sub_f32 v19, v{8+i}, v16")
        k.I("v_fmac_f32 v18, v19, v19")
    wave_allreduce_add(k, 18, 17)
    k.I(f"v_mul_f32 v18, {f32bits(1.0/512)}, v18")
    round_bf16(k, 16, 16)
    round_bf16(k, 18, 18)
    k.I(f"v_add_f32 v18, {f32bits(1e-5)}, v18")
    round_bf16(k, 18, 18)
    k.I("v_sqrt_f32 v18, v18")
    k.I("s_nop 0")
    round_bf16(k, 18, 18)
    k.I("v_rcp_f32 v19, v18")
    for i in range(8):
        k.I(f"v_sub_f32 v{8+i}, v{8+i}, v16")
    for i in range(4):
        k.I(f"v_cvt_pk_bf16_f32 v{4+i}, v{8+2*i}, v{9+2*i}")
    for i in range(4):
        k.I(f"v_lshlrev_b32 v{8+2*i}, 16, v{4+i}")
        k.I(f"v_and_b32 v{9+2*i}, 0xffff0000, v{4+i}")
    for i in range(8):
        k.I(f"v_mul_f32 v20, v{8+i}, v19")
        k.I(f"v_fma_f32 v21, -v20, v18, v{8+i}")
        k.I(f"v_fma_f32 v{8+i}, v21, v19, v20")
    for i in range(4):
        k.I(f"v_cvt_pk_bf16_f32 v{4+i}, v{8+2*i}, v{9+2*i}")
    k.L("L_ln_store")
    k.I("buffer_store_dwordx4 v[4:7], v1, s[12:15], 0 offen")
    k.I("s_waitcnt vmcnt(0)")
    k.L("L_ln_done")
    k.I("s_endpgm")
    k.meta = dict(vgpr=48, agpr=0, sgpr=48)
    return k

import os
PFL = set(os.environ.get("PROJ_FLAGS", "").split(","))
def gen_proj():
    k = Kern("proj")
    def stamp_dyn():
        if "stamp" not in PFL: return
        k.I("s_memtime s[80:81]")
        k.I("s_waitcnt lgkmcnt(0)")
        k.I("v_mov_b32 v125, s80")
        k.I("v_cmp_eq_u32 vcc, s82, v124")
        k.I("s_nop 1")
        k.I("v_cndmask_b32 v126, v126, v125, vcc")
        k.I("s_add_u32 s82, s82, 1")
    S_A = 8; S_WS = 12; S_BC = 16; S_BN = 20
    sPlo = 24; sPhi = 26; sSzHi = 28; sStrHi = 29
    sU = 30; sUend = 31; sWb = 32; sIsX = 33
    sSoC = 34; sS8C = 35; sS128C = 36
    sSoN = 37; sS8N = 38; sS128N = 39
    sT = 40; sT2 = 41; sM = 42
    sRb32 = 44; sOutU = 45
    sScale = 46
    sLo = 64; sSt0 = 65; sSt1 = 66; sSwap = 67; sPar = 68; sGrp = 69
    vL = 1; vT = 2; vT2 = 3; vT3 = 4
    vRd0 = 5; vRd1 = 6
    vDmaLo = 7; vDmaHi = 8; vDmaC = 9; vDmaN = 10; vL16 = 11; vRdH0 = 2; vRdH1 = 3
    vAcc = [12, 44]
    vPk = 76
    vFr = 92
    NFR = 8
    NV = vFr + NFR * 4
    AHEAD = int(os.environ.get("PROJ_AHEAD", "5"))
    BARPOS = 8

    k.L("proj_kernel")
    k.I("s_cmp_ge_u32 s2, 256")
    k.I("s_cbranch_scc1 L_proj_done")
    if "stamp" in PFL:
        k.I("s_mov_b32 s82, 0")
        k.I("v_mov_b32 v126, 0")
        k.I("v_and_b32 v124, 63, v0")
        k.I("s_memrealtime s[92:93]")
    stamp_dyn()
    k.I("s_load_dwordx4 s[52:55], s[0:1], 16")
    k.I("s_load_dwordx2 s[56:57], s[0:1], 32")
    k.I("s_load_dwordx2 s[58:59], s[0:1], 56")
    k.I("s_load_dwordx2 s[60:61], s[0:1], 88")
    k.I("s_and_b32 s62, s2, 7")
    k.I("s_lshr_b32 s63, s2, 3")
    k.I(f"s_and_b32 s{sRb32}, s63, 7")
    k.I("s_lshr_b32 s63, s63, 3")
    k.I("s_lshl_b32 s62, s62, 2")
    k.I("s_add_u32 s62, s62, s63")
    k.I("s_cmp_lt_u32 s62, 13")
    k.I(f"s_cselect_b32 s{sIsX}, 1, 0")
    k.I("s_sub_u32 s63, s62, 13")
    k.I("s_cselect_b32 s62, s62, s63")
    k.I(f"s_mul_i32 s{sU}, s62, 7")
    k.I(f"s_add_u32 s{sUend}, s{sU}, 7")
    k.I(f"s_cmp_eq_u32 s{sIsX}, 1")
    k.I("s_mov_b32 s63, 128")
    k.I("s_cselect_b32 s63, 86, s63")
    k.I(f"s_min_u32 s{sUend}, s{sUend}, s63")
    k.I(f"v_and_b32 v{vL}, 63, v0")
    k.I(f"v_lshrrev_b32 v{vT}, 6, v0")
    k.I(f"v_lshlrev_b32 v{vL16}, 4, v{vL}")
    k.I(f"v_readfirstlane_b32 s{sWb}, v{vT}")
    k.I("s_waitcnt lgkmcnt(0)")
    k.I(f"s_cmp_eq_u32 s{sIsX}, 1")
    k.I(f"s_cselect_b32 s{sPlo}, s52, s54")
    k.I(f"s_cselect_b32 s{sPlo+1}, s53, s55")
    k.I(f"s_cselect_b32 s{sPhi}, s58, s56")
    k.I(f"s_cselect_b32 s{sPhi+1}, s59, s57")
    k.I(f"s_mov_b32 s{sT}, {512*1376*2}")
    k.I(f"s_mov_b32 s{sT2}, {4*MB}")
    k.I(f"s_cselect_b32 s{sSzHi}, s{sT}, s{sT2}")
    k.I(f"s_mov_b32 s{sT}, 2752")
    k.I(f"s_mov_b32 s{sT2}, 8192")
    k.I(f"s_cselect_b32 s{sStrHi}, s{sT}, s{sT2}")
    k.I(f"s_cselect_b32 s{sT}, {hex(XN_OFF)}, {hex(CKF_OFF)}")
    k.I(f"s_add_u32 s{S_A}, s60, s{sT}")
    k.I(f"s_addc_u32 s{S_A+1}, s61, 0")
    k.I(f"s_mov_b32 s{S_A+2}, {hex(2*MB)}")
    k.I(f"s_mov_b32 s{S_A+3}, 0x00020000")
    srd(k, S_WS, 60, 61, WS_SIZE)
    k.I(f"s_lshl_b32 s{sRb32}, s{sRb32}, 3")
    k.I(f"s_add_u32 s{sRb32}, s{sRb32}, s{sWb}")
    k.I(f"s_lshl_b32 s62, s{sRb32}, 15")
    for ks in range(8):
        if ks == 4:
            k.I("s_add_u32 s62, s62, 4096")
        k.I(f"buffer_load_dwordx4 {a(4*ks,4)}, v{vL16}, s[{S_A}:{S_A+3}], s62 offen offset:{(ks%4)*1024}")
    k.I(f"v_lshrrev_b32 v{vT}, 3, v{vL}")
    k.I(f"s_lshl_b32 s{sT}, s{sWb}, 4")
    k.I(f"v_add_u32 v{vT}, s{sT}, v{vT}")
    k.I(f"v_and_b32 v{vT2}, 7, v{vL}")
    k.I(f"v_lshrrev_b32 v{vT3}, 2, v{vL}")
    k.I(f"v_and_b32 v{vT3}, 4, v{vT3}")
    k.I(f"v_xor_b32 v{vT2}, v{vT2}, v{vT3}")
    k.I(f"v_lshlrev_b32 v{vT2}, 4, v{vT2}")
    k.I(f"v_lshl_add_u32 v{vDmaLo}, v{vT}, 13, v{vT2}")
    k.I(f"v_mul_lo_u32 v{vDmaHi}, v{vT}, s{sStrHi}")
    k.I(f"v_add_u32 v{vDmaHi}, v{vDmaHi}, v{vT2}")
    k.I(f"v_lshrrev_b32 v{vT}, 5, v{vL}")
    k.I(f"v_lshlrev_b32 v{vT}, 3, v{vT}")
    k.I(f"v_bfe_u32 v{vT2}, v{vL}, 2, 2")
    k.I(f"v_add_u32 v{vT}, v{vT}, v{vT2}")
    k.I(f"v_lshlrev_b32 v{vRd0}, 7, v{vT}")
    k.I(f"v_bfe_u32 v{vT}, v{vL}, 3, 1")
    k.I(f"v_lshl_add_u32 v{vRd0}, v{vT}, 6, v{vRd0}")
    k.I(f"v_bfe_u32 v{vT}, v{vL}, 4, 1")
    k.I(f"v_lshl_add_u32 v{vRd0}, v{vT}, 5, v{vRd0}")
    k.I(f"v_and_b32 v{vT}, 3, v{vL}")
    k.I(f"v_lshl_add_u32 v{vRd0}, v{vT}, 3, v{vRd0}")
    k.I(f"v_xor_b32 v{vRd1}, 64, v{vRd0}")
    k.I(f"s_mov_b32 s{sSt0}, {hex(BIGOFF)}")
    k.I(f"s_mov_b32 s{sSt1}, {hex(BIGOFF)}")
    k.I(f"s_mov_b32 s{sSwap}, 0")
    k.I(f"s_mov_b32 s{sPar}, 0")
    k.I(f"s_mov_b32 s{sScale}, 1.0")
    k.I(f"s_mov_b32 s{sScale+1}, 1.0")
    k.I(f"s_mov_b32 s{sLo}, 0")
    k.I(f"s_lshl_b32 s{sWb}, s{sWb}, 11")

    k.I(f"v_add_u32 v{vRdH0}, 0x10000, v{vRd0}")
    k.I(f"v_add_u32 v{vRdH1}, 0x10000, v{vRd1}")
    SET = [dict(D=16, so=34, s8=35, s128=36, vd=9), dict(D=20, so=37, s8=38, s128=39, vd=10)]
    sVthr = 69
    k.I(f"s_cmp_eq_u32 s{sIsX}, 1")
    k.I(f"s_cselect_b32 s{sVthr}, 0x7fffffff, 64")

    def desc_groups(ur, S):
        D, so, s8, s128, vd = S["D"], S["so"], S["s8"], S["s128"], S["vd"]
        return [[f"s_cmp_ge_u32 s{ur}, 64",
                 f"s_cselect_b32 s{D}, s{sPhi}, s{sPlo}",
                 f"s_cselect_b32 s{D+1}, s{sPhi+1}, s{sPlo+1}",
                 f"s_cselect_b32 s{D+2}, s{sSzHi}, {hex(4*MB)}"],
                [f"s_cmp_ge_u32 s{ur}, 64",
                 f"s_cselect_b32 s{s8}, s{sStrHi}, 8192",
                 f"s_cselect_b64 s[{sM}:{sM+1}], -1, 0",
                 f"v_cndmask_b32 v{vd}, v{vDmaLo}, v{vDmaHi}, s[{sM}:{sM+1}]"],
                [f"s_mov_b32 s{D+3}, 0x00020000",
                 f"s_cmp_ge_u32 s{ur}, s{sUend}",
                 f"s_cselect_b32 s{D+2}, 0, s{D+2}"],
                [f"s_and_b32 s{so}, s{ur}, 63",
                 f"s_lshl_b32 s{so}, s{so}, 7",
                 f"s_lshl_b32 s{s128}, s{s8}, 7",
                 f"s_lshl_b32 s{s8}, s{s8}, 3"]]

    def dma(stage, slot, S):
        D, so, s8, s128, vd = S["D"], S["so"], S["s8"], S["s128"], S["vd"]
        k.I(f"s_mul_i32 s{sT}, s{s128}, {stage}")
        k.I(f"s_add_u32 s{sT}, s{sT}, s{so}")
        k.I(f"s_add_u32 m0, s{sWb}, {slot*16384}")
        k.I(f"s_add_u32 s{sT2}, s{sT}, s{s8}")
        k.I(f"buffer_load_dwordx4 v{vd}, s[{D}:{D+3}], s{sT} offen lds")
        k.I(f"s_add_u32 m0, s{sWb}, {slot*16384+1024}")
        k.I("s_nop 0")
        k.I(f"buffer_load_dwordx4 v{vd}, s[{D}:{D+3}], s{sT2} offen lds")

    def aloads(lo, hi):
        for ks in range(lo, hi):
            if ks and ks % 4 == 0:
                k.I("s_add_u32 s62, s62, 4096")
            k.I(f"buffer_load_dwordx4 {a(4*ks,4)}, v{vL16}, s[{S_A}:{S_A+3}], s62 offen offset:{(ks%4)*1024}")

    for g in desc_groups(sU, SET[0]):
        for x in g: k.I(x)
    dma(0, 0, SET[0]); dma(1, 1, SET[0])
    k.I(f"s_add_u32 s70, s{sU}, 1")
    for g in desc_groups(70, SET[1]):
        for x in g: k.I(x)
    k.I("s_waitcnt vmcnt(2)")
    k.I("s_barrier")

    def rd(i, par=0):
        i2 = i % 64
        if i >= 64: par = 1 - par
        j, r = divmod(i2, 16)
        ks, t = divmod(r, 2)
        fr = vFr + 4 * (i % NFR)
        base = ((vRd0, vRd1), (vRdH0, vRdH1))[par][t]
        off = j * 16384 + ks * 2048
        k.I(f"ds_read_b64_tr_b16 {v(fr,2)}, v{base} offset:{off}")
        k.I(f"ds_read_b64_tr_b16 {v(fr+2,2)}, v{base} offset:{off+512}")
    for i in range(AHEAD):
        rd(i)

    def pack_items(par):
        it = []
        base = vAcc[par]
        for x in range(16):
            it.append(f"v_mul_f32 v{base+2*x}, s{sScale}, v{base+2*x}")
            it.append(f"v_mul_f32 v{base+2*x+1}, s{sScale}, v{base+2*x+1}")
            it.append(f"v_max_f32 v{base+2*x}, s{sLo}, v{base+2*x}")
            it.append(f"v_max_f32 v{base+2*x+1}, s{sLo}, v{base+2*x+1}")
            it.append(f"v_cvt_pk_bf16_f32 v{vPk+x}, v{base+2*x}, v{base+2*x+1}")
        return it
    def swaps():
        lab = k.newlabel("nosw")
        k.I(f"s_cmp_eq_u32 s{sSwap}, 0")
        k.I(f"s_cbranch_scc1 {lab}")
        for t in range(2):
            for jp in range(2):
                b = vPk + 8 * t + 4 * jp
                k.I(f"v_permlane32_swap_b32 v{b}, v{b+2}")
                k.I(f"v_permlane32_swap_b32 v{b+1}, v{b+3}")
        k.L(lab)
    def stores():
        for t, ss in ((0, sSt0), (1, sSt1)):
            for jp in range(2):
                k.I(f"buffer_store_dwordx4 {v(vPk+8*t+4*jp,4)}, v{vL16}, s[{S_WS}:{S_WS+3}], s{ss} offen offset:{1024*jp}")

    def setpend_groups():
        A_, B_, C_, D_ = 71, 72, 73, 74
        return [[f"s_and_b32 s{A_}, s{sU}, 63",
                 f"s_lshr_b32 s{B_}, s{A_}, 1",
                 f"s_lshl_b32 s{B_}, s{B_}, 6",
                 f"s_add_u32 s{B_}, s{B_}, s{sRb32}"],
                [f"s_lshl_b32 s{B_}, s{B_}, 13",
                 f"s_and_b32 s{C_}, s{A_}, 1",
                 f"s_lshl_b32 s{C_}, s{C_}, 12",
                 f"s_add_u32 s{B_}, s{B_}, s{C_}"],
                [f"s_mul_i32 s{C_}, s{sRb32}, 86",
                 f"s_lshl_b32 s{D_}, s{A_}, 2",
                 f"s_add_u32 s{C_}, s{C_}, s{D_}",
                 f"s_lshl_b32 s{C_}, s{C_}, 10"],
                [f"s_add_u32 s{C_}, s{C_}, {hex(H_OFF)}",
                 f"s_mov_b32 s{D_}, {hex(KW_OFF)}"],
                [f"s_cmp_ge_u32 s{sU}, 64",
                 f"s_cselect_b32 s{D_}, {hex(VT_OFF)}, s{D_}",
                 f"s_cselect_b32 s{sSwap}, 0, 1"],
                [f"s_cmp_eq_u32 s{sIsX}, 1",
                 f"s_cselect_b32 s{D_}, {hex(QW_OFF)}, s{D_}",
                 f"s_cselect_b32 s{sSwap}, 1, s{sSwap}",
                 f"s_add_u32 s{sSt0}, s{B_}, s{D_}"],
                [f"s_cmp_ge_u32 s{sU}, 64",
                 f"s_cselect_b32 s{D_}, s{sIsX}, 0"],
                [f"s_cmp_eq_u32 s{D_}, 1",
                 f"s_cselect_b32 s{sSt0}, s{C_}, s{sSt0}",
                 f"s_cselect_b32 s{sLo}, 0, 0xff800000",
                 f"s_add_u32 s{sSt1}, s{sSt0}, 2048"],
                [f"s_cmp_eq_u32 s{sU}, 85",
                 f"s_cselect_b32 s{D_}, s{D_}, 0"],
                [f"s_cmp_eq_u32 s{D_}, 1",
                 f"s_cselect_b32 s{sSt1}, {hex(BIGOFF)}, s{sSt1}"],
                [f"s_cmp_lt_u32 s{sU}, 64",
                 f"s_cselect_b32 s{D_}, s{sIsX}, 0"],
                [f"s_cmp_eq_u32 s{D_}, 1",
                 f"s_cselect_b32 s{sScale}, {f32bits(QSCALE)}, 1.0"]]

    DP = int(os.environ.get("PROJ_DP", "4")); SP = int(os.environ.get("PROJ_SP", "6"))
    def body(orient, par, first=False):
        stamp_dyn()
        NW = [14, 14, 18, 18]
        pk = pack_items(1 - par)
        f1 = [[f"s_add_u32 s70, s{sU}, 2"]] + desc_groups(70, SET[par])
        f2 = setpend_groups()
        vm = ["A7", "D0", "D0", "D1", "D1"]
        def wait_for(tag):
            idx = max(n for n, x in enumerate(vm) if x == tag)
            k.I(f"s_waitcnt vmcnt({len(vm) - 1 - idx})")
        anext = [8]
        for i in range(64):
            j, r = divmod(i, 16)
            ks, t = divmod(r, 2)
            fr = vFr + 4 * (i % NFR)
            if first and r == 0 and j > 0:
                wait_for(f"A{8*j+7}")
            k.I(f"s_waitcnt lgkmcnt({2*(AHEAD-1)})")
            kg = 8 * j + ks
            acc = v(vAcc[par] + 16 * t, 16)
            c = "0" if kg == 0 else acc
            if orient == "N":
                k.I(f"v_mfma_f32_32x32x16_bf16 {acc}, {v(fr,4)}, {a(4*kg,4)}, {c}")
            else:
                k.I(f"v_mfma_f32_32x32x16_bf16 {acc}, {a(4*kg,4)}, {v(fr,4)}, {c}")
            if r == BARPOS - 1:
                if first: wait_for(f"D{j+1}")
                else: k.I(f"s_waitcnt vmcnt({NW[j]})")
                k.I("s_barrier")
            if r == BARPOS - 1 + DP:
                if first and j == 0:
                    for st in (5, 6):
                        dma(st - 4, st, SET[1]); vm.extend([f"D{st}"] * 2)
                if j == 0: dma(3, 4 * (1 - par) + 3, SET[1 - par])
                else: dma(j - 1, 4 * par + j - 1, SET[par])
                vm.extend([f"D{j+7}"] * 2)
            elif first and i in (8, 9, 10):
                st = i - 6
                dma(st % 4, st, SET[st // 4]); vm.extend([f"D{st}"] * 2)
            elif r == BARPOS - 1 + SP and j == 1:
                stores(); vm.extend(["S"] * 4)
            elif first and anext[0] < 32 and r != BARPOS - 1:
                aloads(anext[0], anext[0] + 1); vm.append(f"A{anext[0]}"); anext[0] += 1
            rd(i + AHEAD, par)
            if i >= 2 and i < 17:
                for _ in range(6):
                    if pk: k.I(pk.pop(0))
            if j == 1 and r == 1:
                assert not pk
                swaps()
            if i >= 18 and f1 and r not in (BARPOS - 1, BARPOS - 1 + DP, BARPOS - 1 + SP):
                for x in f1.pop(0): k.I(x)
            elif i >= 32 and f2 and r not in (BARPOS - 1, BARPOS - 1 + DP):
                for x in f2.pop(0): k.I(x)
        assert not f1 and not f2
        k.I(f"s_add_u32 s{sU}, s{sU}, 1")
        k.I(f"s_branch L_proj_disp{1-par}")

    k.I(f"s_cmp_ge_u32 s{sU}, s{sVthr}")
    k.I("s_cbranch_scc1 L_proj_fV")
    body("N", 0, True)
    k.L("L_proj_fV")
    body("V", 0, True)
    for par in range(2):
        k.L(f"L_proj_disp{par}")
        k.I(f"s_cmp_ge_u32 s{sU}, s{sUend}")
        k.I(f"s_cbranch_scc1 L_proj_fin{1-par}")
        k.I(f"s_cmp_ge_u32 s{sU}, s{sVthr}")
        k.I(f"s_cbranch_scc1 L_proj_bV{par}")
        body("N", par)
        k.L(f"L_proj_bV{par}")
        body("V", par)
    for par in range(2):
        k.L(f"L_proj_fin{par}")
        k.nop(8)
        for x in pack_items(par): k.I(x)
        if par == 0: k.I("s_branch L_proj_fin")
    k.L("L_proj_fin")
    k.I("s_nop 1")
    swaps()
    stores()
    stamp_dyn()
    if "stamp" in PFL:
        k.I("s_memrealtime s[94:95]")
        k.I("s_waitcnt lgkmcnt(0)")
        k.I("s_sub_u32 s94, s94, s92")
        k.I("v_mov_b32 v125, s94")
        k.I("v_cmp_eq_u32 vcc, 47, v124")
        k.I("s_nop 1")
        k.I("v_cndmask_b32 v126, v126, v125, vcc")
        k.I("s_cmp_lg_u32 s2, %s" % os.environ.get("STWG", "8"))
        k.I("s_cbranch_scc1 L_proj_done")
        k.I("s_load_dwordx2 s[70:71], s[0:1], 80")
        k.I("s_waitcnt lgkmcnt(0)")
        k.I("s_mov_b32 s76, s70")
        k.I("s_mov_b32 s77, s71")
        k.I("s_mov_b32 s78, 256")
        k.I("s_mov_b32 s79, 0x00020000")
        k.I("v_lshlrev_b32 v125, 2, v0")
        k.I("buffer_store_dword v126, v125, s[76:79], 0 offen")
    k.L("L_proj_done")
    k.I("s_endpgm")
    k.meta = dict(vgpr=128, agpr=128, sgpr=100)
    return k
```

```python
import sys, subprocess, re
src, dst, mode = sys.argv[1], sys.argv[2], int(sys.argv[3])
shift = int(sys.argv[4]) if len(sys.argv) > 4 else 0
lines = open(src).read().split("\n")
t0 = next(i for i, l in enumerate(lines) if l.startswith("qa_kernel:"))
t1 = next(i for i, l in enumerate(lines) if l.startswith(".section .rodata"))
body = [l for l in lines[t0+1:t1] if not l.strip().startswith(".p2align")]
tmp = lines[:t0+1] + body + lines[t1:]
open("al_in.s", "w").write("\n".join(tmp))
subprocess.run(["clang", "-x", "assembler", "-target", "amdgcn-amd-amdhsa", "-mcpu=gfx950", "-c", "al_in.s", "-o", "al_in.o"], check=True)
out = subprocess.run(["llvm-objdump", "-d", "--mcpu=gfx950", "al_in.o"], capture_output=True, text=True).stdout
sizes = []
for ln in out.splitlines():
    m = re.match(r"^\s+(\S+).*//\s*([0-9A-F]+):\s*((?:[0-9A-F]{8}\s*)+)", ln)
    if m: sizes.append((m.group(1), 4*len(m.group(3).split())))
def is_ins(l):
    s = l.strip()
    return s and not s.startswith(";") and not s.startswith(".") and not s.endswith(":") and not s.startswith("//")
ins = [i for i, l in enumerate(body) if is_ins(l)]
assert len(ins) == len(sizes), (len(ins), len(sizes))
for i, (op, sz) in zip(ins, sizes):
    o2 = body[i].split()[0]
    assert op.replace("_e32", "").replace("_e64", "") == o2.replace("_e32", "").replace("_e64", ""), (op, o2)
WIDE = {"v_exp_f32", "v_add_f32", "v_mov_b32", "v_add_u32", "v_max_f32", "v_mul_f32", "v_sub_f32", "v_and_b32", "v_or_b32", "v_xor_b32",
        "v_lshlrev_b32", "v_lshrrev_b32", "v_cmp_gt_i32", "v_cmp_ge_f32", "v_cndmask_b32", "v_sub_u32", "v_fmac_f32", "v_rcp_f32", "v_rsq_f32",
        "v_cmp_lt_u32", "v_cmp_gt_u32", "v_cmp_eq_u32", "v_cmp_gt_f32", "v_cmp_lt_f32", "v_min_f32", "v_cvt_f32_u32", "v_subrev_u32", "v_ashrrev_i32",
        "v_cmp_le_i32", "v_cmp_lt_i32", "v_cmp_ge_i32", "v_cmp_ge_u32", "v_cmp_le_u32", "v_cmp_ne_u32", "v_log_f32", "v_sqrt_f32", "v_mul_u32_u24", "v_max_i32", "v_min_i32", "v_min_u32", "v_max_u32"}
def widenable(l):
    op = l.split()[0]
    if op not in WIDE: return False
    if "dpp" in l or "row_" in l or "quad_perm" in l or "sdwa" in l or "wave_" in l or "_sel" in l: return False
    return True
res = list(body)
pre = {}
phase = shift % 8
run = []
nw = nn = nl = 0
for i, (op, sz) in zip(ins, sizes):
    if sz == 4:
        run.append(i); phase = (phase + 4) % 8
        if phase == 0 and False: run = []
    else:
        if phase == 4:
            start_phase = (phase - 4*len(run)) % 8
            cand = [j for k, j in enumerate(run) if (start_phase + 4*k) % 8 == 0 and widenable(body[j])]
            if cand:
                j = cand[-1]; p = body[j].split(None, 1)
                res[j] = "  " + p[0] + "_e64 " + p[1]; nw += 1; phase = 0
            elif mode >= 2:
                pre[i] = ["  s_nop 0"]; nn += 1; phase = 0
            else:
                nl += 1
        phase = (phase + sz) % 8
        run = []
outl = []
for i, l in enumerate(res):
    if i in pre: outl += pre[i]
    outl.append(l)
head = lines[:t0+1] + ["  s_nop 0"] * (shift // 4)
open(dst, "w").write("\n".join(head + outl + lines[t1:]))
print("widened", nw, "nops", nn, "left", nl)
```
